```python
import torch

def _softmax(x, axis=-1):
    return torch.softmax(x, dim=axis)
def _gelu(x):
    return torch.nn.functional.gelu(x, approximate="tanh")
def _silu(x):
    return torch.nn.functional.silu(x)
def _sigmoid(x):
    return torch.sigmoid(x)
def _layernorm(x, axis=-1, eps=1e-5):
    m = x.mean(dim=axis, keepdim=True)
    v = x.var(dim=axis, keepdim=True, unbiased=False)
    return (x - m) / torch.sqrt(v + eps)
def _scatter_add(tgt, idx, src, axis=0):
    return tgt.clone().index_add_(axis, idx, src)
def _segment_sum(src, seg, n):
    out = torch.zeros((n,) + src.shape[1:], dtype=src.dtype)
    return out.index_add_(0, seg, src)
def _pad(x, pw):
    flat = tuple(v for pair in reversed(pw) for v in pair)
    return torch.nn.functional.pad(x, flat)

kernel_name = 'gated_mix__sliding_block_cached__gqa_block_cached__decode'

def setup_inputs():

    _w = (lambda a: (lambda t: t.to(torch.bfloat16) if t.is_floating_point() else t)(torch.as_tensor(a)))
    def _A_setup():
        B, Sq, D = 2, 1, 1024
        Hq, Hkv, Sk, Dh = 32, 4, 32768, 128
        assert Hq % Hkv == 0, (Hq, Hkv)
        return {
            "x": _w((lambda *s: torch.randn(*s, dtype=torch.bfloat16) * 0.05)(B, Sq, D)),
            "k_cache": _w((lambda *s: torch.randn(*s, dtype=torch.bfloat16) * 6.4)(B, Hkv, Sk, Dh)),
            "v_cache": _w((lambda *s: torch.randn(*s, dtype=torch.bfloat16) * 0.05)(B, Hkv, Sk, Dh)),
            "wq": _w((lambda *s: torch.randn(*s, dtype=torch.bfloat16) * 6.4)(D, Hq * Dh) * (D ** -0.5)),
            "wo": _w((lambda *s: torch.randn(*s, dtype=torch.bfloat16) * 0.05)(Hq * Dh, D) * ((Hq * Dh) ** -0.5)),
        }
    _A_in = _A_setup()

    def _B_setup():
        B, Sq, D = 2, 1, 1024
        Hq, Hkv, Sk, Dh = 32, 4, 32768, 128
        assert Hq % Hkv == 0, (Hq, Hkv)
        return {
            "x": _w((lambda *s: torch.randn(*s, dtype=torch.bfloat16) * 0.05)(B, Sq, D)),
            "k_cache": _w((lambda *s: torch.randn(*s, dtype=torch.bfloat16) * 6.4)(B, Hkv, Sk, Dh)),
            "v_cache": _w((lambda *s: torch.randn(*s, dtype=torch.bfloat16) * 0.05)(B, Hkv, Sk, Dh)),
            "wq": _w((lambda *s: torch.randn(*s, dtype=torch.bfloat16) * 6.4)(D, Hq * Dh) * (D ** -0.5)),
            "wo": _w((lambda *s: torch.randn(*s, dtype=torch.bfloat16) * 0.05)(Hq * Dh, D) * ((Hq * Dh) ** -0.5)),
        }
    _B_in = _B_setup()

    return {
        "A_x": _A_in["x"],
        "A_k_cache": _A_in["k_cache"],
        "A_v_cache": _A_in["v_cache"],
        "A_wq": _A_in["wq"],
        "A_wo": _A_in["wo"],
        "B_x": _B_in["x"],
        "B_k_cache": _B_in["k_cache"],
        "B_v_cache": _B_in["v_cache"],
        "B_wq": _B_in["wq"],
        "B_wo": _B_in["wo"],
        "gate_w": _w((lambda *s: torch.randn(*s, dtype=torch.bfloat16) * 0.05)(1024) * 16.0),
    }

def reference(A_x, A_k_cache, A_v_cache, A_wq, A_wo, B_x, B_k_cache, B_v_cache, B_wq, B_wo, gate_w):
    def _A_ref(x, k_cache, v_cache, wq, wo):
        B, Sq, D = x.shape
        Hq, Dh = 32, 128
        Hkv, Sk = k_cache.shape[1], k_cache.shape[2]
        W = min(4096, max(256, Sk // 4))
        rep = Hq // Hkv
        q = (lambda x, *d: x.permute(*d))((x @ wq).reshape(B, Sq, Hq, Dh), 0, 2, 1, 3)
        k = (lambda x, n, axis: torch.repeat_interleave(x, n, dim=axis))(k_cache[:, :, Sk - W:, :], rep, axis=1)
        v = (lambda x, n, axis: torch.repeat_interleave(x, n, dim=axis))(v_cache[:, :, Sk - W:, :], rep, axis=1)
        scores = torch.einsum("bhqd,bhkd->bhqk", q, k) * (Dh ** -0.5)
        p = _softmax(scores, axis=-1)
        o = torch.einsum("bhqk,bhkd->bhqd", p, v)
        return (lambda x, *d: x.permute(*d))(o, 0, 2, 1, 3).reshape(B, Sq, Hq * Dh) @ wo

    def _B_ref(x, k_cache, v_cache, wq, wo):
        B, Sq, D = x.shape
        Hq, Dh = 32, 128
        Hkv = k_cache.shape[1]
        rep = Hq // Hkv
        q = (lambda x, *d: x.permute(*d))((x @ wq).reshape(B, Sq, Hq, Dh), 0, 2, 1, 3)
        k = (lambda x, n, axis: torch.repeat_interleave(x, n, dim=axis))(k_cache, rep, axis=1)
        v = (lambda x, n, axis: torch.repeat_interleave(x, n, dim=axis))(v_cache, rep, axis=1)
        scores = torch.einsum("bhqd,bhkd->bhqk", q, k) * (Dh ** -0.5)
        p = _softmax(scores, axis=-1)
        o = torch.einsum("bhqk,bhkd->bhqd", p, v)
        return (lambda x, *d: x.permute(*d))(o, 0, 2, 1, 3).reshape(B, Sq, Hq * Dh) @ wo

    x = A_x
    g = _sigmoid((x * gate_w).sum(-1, keepdims=True))
    a = _A_ref(x, A_k_cache, A_v_cache, A_wq, A_wo)
    b = _B_ref(x, B_k_cache, B_v_cache, B_wq, B_wo)
    return g * a + (1 - g) * b
```

```python
import re

TRANS = ("v_exp_f32", "v_log_f32", "v_rcp_f32", "v_rsq_f32", "v_sqrt_f32", "v_sin_f32", "v_cos_f32")
RMW_DST = ("v_fmac_f32", "v_dot2c_f32_bf16", "v_pk_fmac", "v_writelane_b32")

def regs_of(tok):
    tok = tok.strip()
    tok = re.sub(r"^-|^abs\(|^\|", "", tok).rstrip(")|")
    m = re.fullmatch(r"([vas])(\d+)", tok)
    if m: return {(m.group(1), int(m.group(2)))}
    m = re.fullmatch(r"([vas])\[(\d+):(\d+)\]", tok)
    if m: return {(m.group(1), i) for i in range(int(m.group(2)), int(m.group(3)) + 1)}
    if tok == "vcc": return {("s", 106), ("s", 107)}
    if tok == "vcc_lo": return {("s", 106)}
    if tok == "vcc_hi": return {("s", 107)}
    if tok == "exec": return {("s", 126), ("s", 127)}
    if tok == "m0": return {("s", 124)}
    return set()

class Ins:
    __slots__ = ("text", "op", "cls", "dst", "src", "srcC", "srcAB", "dpp", "pos", "data")

def parse(text):
    t = text.split(";")[0].strip()
    parts = t.split(None, 1)
    op = parts[0]
    rest = parts[1] if len(parts) > 1 else ""
    ops = []; cur = ""; depth = 0
    for ch in rest:
        if ch in "[(": depth += 1
        if ch in "])": depth -= 1
        if ch == "," and depth == 0:
            ops.append(cur.strip()); cur = ""
        else: cur += ch
    if cur.strip(): ops.append(cur.strip())
    mods = ""
    if ops:
        last = ops[-1].split(None, 1)
        if len(last) > 1 and not last[0].endswith(":"):
            ops[-1] = last[0]; mods = last[1]
    I = Ins(); I.text = text; I.op = op; I.dst = set(); I.src = set(); I.srcC = set(); I.srcAB = set(); I.data = set()
    I.dpp = ("_dpp" in op) or ("quad_perm" in mods) or ("row_" in mods)
    R = [regs_of(o) for o in ops]
    base = op.replace("_e32", "").replace("_e64", "").replace("_dpp", "").replace("_sdwa", "")
    if op.startswith("v_mfma"):
        I.cls = "mfma"; I.dst = R[0]; I.srcAB = R[1] | R[2]; I.srcC = R[3]; I.src = I.srcAB | I.srcC
    elif op.startswith("v_cmp"):
        I.cls = "valu"; I.dst = R[0]; I.src = set().union(*R[1:])
    elif base in ("v_permlane32_swap_b32", "v_permlane16_swap_b32"):
        I.cls = "valu"; I.dst = R[0] | R[1]; I.src = R[0] | R[1]
    elif op.startswith("v_"):
        I.cls = "valu"; I.dst = set(R[0]); I.src = set().union(*R[1:]) if len(R) > 1 else set()
        if base in ("v_add_co_u32", "v_sub_co_u32", "v_addc_co_u32"):
            I.dst |= R[1]; I.src = set().union(*R[2:])
        if any(base.startswith(x) for x in RMW_DST) or I.dpp: I.src |= R[0]
        if base == "v_cndmask_b32" and len(ops) == 3: I.src |= regs_of("vcc")
    elif op.startswith("buffer_load") or op.startswith("global_load"):
        I.cls = "vmem"; I.dst = R[0]; I.src = set().union(*R[1:])
    elif op.startswith("buffer_store"):
        I.cls = "vmem"; I.src = set().union(*R); I.data = R[0]
    elif op.startswith("buffer_atomic"):
        I.cls = "vmem"; I.src = set().union(*R); I.data = R[0]
        if "sc0" in mods: I.dst = R[0]
    elif op.startswith("ds_read") or op.startswith("ds_bpermute") or op.endswith("_rtn_u32") or "_rtn_" in op:
        I.cls = "ds"; I.dst = R[0]; I.src = set().union(*R[1:])
    elif op.startswith("ds_"):
        I.cls = "ds"; I.src = set().union(*R)
    elif op.startswith("s_load") or op.startswith("s_memrealtime") or op.startswith("s_memtime"):
        I.cls = "smem"; I.dst = R[0]; I.src = set().union(*R[1:]) if len(R) > 1 else set()
    elif op.startswith("s_"):
        I.cls = "salu"
        if op.startswith(("s_cmp", "s_bitcmp", "s_cbranch", "s_branch", "s_waitcnt", "s_nop", "s_barrier", "s_endpgm", "s_sleep", "s_setprio")):
            I.src = set().union(*R) if R else set()
        else:
            I.dst = R[0] if R else set(); I.src = set().union(*R[1:]) if len(R) > 1 else set()
            if "saveexec" in op: I.dst = I.dst | regs_of("exec")
    else:
        raise ValueError("unknown op " + text)
    I.op = base
    return I

class Asm:
    def __init__(self):
        self.lines = []
        self.pos = 0
        self.hist = []
        self.vm = []
        self.lg = []
        self.nid = 0
        self.smem_pending = set()
        self.check = True
    def raw(self, s): self.lines.append(s)
    def comment(self, s): self.lines.append("    ; " + s)
    def label(self, name):
        self.lines.append(name + ":")
    def fence(self, n=8):
        self.nop(n)
    def nop(self, n):
        while n > 0:
            k = min(n, 16)
            self.lines.append(f"    s_nop {k-1}")
            self.pos += k; n -= k
    def need(self, I):
        req = 0
        for J in reversed(self.hist):
            d = self.pos - J.pos - 1
            if d >= 12: break
            w = 0
            vJ = {r for r in J.dst if r[0] in "va"}
            sJ = {r for r in J.dst if r[0] == "s"}
            if J.cls == "valu":
                if I.cls == "mfma" and vJ & I.src: w = max(w, 2)
                if I.cls == "valu":
                    if I.dpp and vJ & I.src: w = max(w, 2)
                    if I.op.startswith("v_permlane") and vJ & I.src: w = max(w, 2)
                    if I.op in ("v_readlane_b32", "v_readfirstlane_b32") and vJ & I.src: w = max(w, 1)
                    if sJ & I.src: w = max(w, 4 if I.op in ("v_readlane_b32", "v_writelane_b32") else 2)
                if J.op in TRANS and vJ & I.src: w = max(w, 1)
                if I.cls == "vmem" and sJ & I.src: w = max(w, 5)
                if I.cls == "salu" and sJ & I.src: w = max(w, 1)
                if J.op.startswith("v_dot2"):
                    if I.op == J.op and I.cls == "valu":
                        ab = I.src - I.dst
                        if vJ & ab: w = max(w, 3)
                    elif vJ & (I.src | I.dst): w = max(w, 3)
            if J.cls == "mfma":
                if I.cls == "mfma":
                    if vJ & I.srcAB: w = max(w, 8)
                    if vJ & I.srcC and I.srcC != J.dst: w = max(w, 6)
                    if vJ & I.dst and I.srcC != J.dst: w = max(w, 8)
                elif vJ & (I.src | I.dst): w = max(w, 8)
                if I.cls == "valu" and J.srcC & I.dst: w = max(w, 3)
            if J.cls == "vmem" and len(J.data) >= 3 and J.data & I.dst:
                w = max(w, 2)
            req = max(req, w - d)
        return req
    def __call__(self, text, cond=False):
        I = parse(text)
        if self.check:
            touched = I.src | I.dst
            for (i, dst, c) in self.vm:
                assert not (dst & touched), f"vm hazard: {text} touches pending load dst {sorted(dst & touched)[:4]}"
            for (i, dst) in self.lg:
                assert not (dst & touched), f"lgkm hazard: {text} touches pending ds dst"
            assert not (self.smem_pending & touched) or I.cls == "smem", f"smem hazard: {text}"
        if I.cls == "vmem" and len(self.vm) >= 63:
            self("s_waitcnt vmcnt(62)"); self.vm = self.vm[-62:]
        n = self.need(I)
        if n > 0: self.nop(n)
        self.lines.append("    " + text)
        I.pos = self.pos
        m = re.fullmatch(r"s_nop (\d+)", text.strip())
        self.pos += int(m.group(1)) + 1 if m else 1
        self.hist.append(I)
        if len(self.hist) > 40: self.hist.pop(0)
        if I.cls == "vmem":
            self.nid += 1; self.vm.append((self.nid, set(I.dst), cond)); return self.nid
        if I.cls == "ds":
            self.nid += 1; self.lg.append((self.nid, set(I.dst))); return self.nid
        if I.cls == "smem":
            self.smem_pending |= I.dst
        return None
    def wait_vm(self, tok):
        idx = [k for k, (i, d, c) in enumerate(self.vm) if i == tok]
        if not idx: return
        younger = [e for e in self.vm[idx[0] + 1:] if not e[2]]
        n = min(len(younger), 63)
        self(f"s_waitcnt vmcnt({n})")
        self.vm = self.vm[idx[0] + 1:]
    def wait_vm_all(self):
        self("s_waitcnt vmcnt(0)"); self.vm = []
    def wait_lg(self, tok=None):
        if tok is None or self.smem_pending:
            self("s_waitcnt lgkmcnt(0)"); self.lg = []; self.smem_pending = set(); return
        idx = [k for k, (i, d) in enumerate(self.lg) if i == tok]
        if not idx: return
        n = len(self.lg) - idx[0] - 1
        if n > 15: n = 15
        self(f"s_waitcnt lgkmcnt({n})")
        self.lg = self.lg[len(self.lg) - n:] if n else []
    def text(self): return "\n".join(self.lines) + "\n"
```

```python
import sys
sys.path.insert(0, "gen")
from asmlib import Asm

NAME = "gated_mix__sliding_block_cached__gqa_block_cached__decode_kernel"
REF = "gated_mix__sliding_block_cached__gqa_block_cached__decode.s.ref"
WS_BYTES = 302000128
WS_E, WS_Q, WS_ST, WS_P1, WS_P2, WS_STAMP = 0, 0x10000, 0x20000, 0x100000, 0x400000, 0x10000000
QL, QLB, QLH = 0, 2176, 272
QR = 4608
OL = 5632
STL = 6144
ML, MLB, MLW, MLH = 8192, 16896, 4224, 528
LDS_BYTES = 43008
LOG2E = 0x3fb8aa3b
SCALE = 0x3db504f3

def vr(b, n=4): return f"v[{b}:{b+n-1}]"
def ar(b, n=4): return f"a[{b}:{b+n-1}]"
def sr(b, n=4): return f"s[{b}:{b+n-1}]"

def gen(pol="nt", stamps=False, polw=None):
    polw = pol if polw is None else polw
    A = Asm()
    slow = []
    hdr = open(REF).read().split("; Override launch")[0].rstrip()
    A.raw(hdr)
    A.raw(f"; @launch grid=(256,1,1) block=(256,1,1) lds={LDS_BYTES}")
    A.raw('.amdgcn_target "amdgcn-amd-amdhsa--gfx950"')
    A.raw(".text"); A.raw(f".globl {NAME}"); A.raw(".p2align 8"); A.raw(f".type {NAME},@function"); A.raw(f"{NAME}:")
    AK, AV, BK, BV, WQ, WOA, WOB, WS, XS, GW, OUT = 36, 40, 44, 48, 52, 56, 60, 64, 68, 72, 76
    sB, sHKV, sS, sT, sT2 = 80, 81, 82, 83, 84
    sKB, sKA, sWQ, sWO, sTAG12, sTAG16, sPLO, sPHI = 85, 86, 87, 88, 89, 90, 91, 92
    sL2E, sSC, sM12, sG, sOMG, sHI16, sRB, sCNT = 93, 94, 95, 96, 97, 98, 99, 100
    sE1 = 101
    sSCP = 4
    sEX = 6
    ST0 = 8
    nst = [0]
    def stamp():
        if stamps:
            A(f"s_memrealtime s[{ST0+2*nst[0]}:{ST0+2*nst[0]+1}]"); nst[0] += 1
            A.smem_pending = set()
    vL, vK, vL16, vWq, vX, vWo, vL32, vT0, vT1, vT2, vT3 = 0, 1, 2, 3, 4, 5, 6, 7, 8, 9, 10
    vM, vML, vLs, vAl = 11, 12, 13, 14
    vE = 16
    S = 20
    P = 28
    C = 32
    T = 36
    X = 52
    ACC = 68
    G = 84
    O = 96
    VB = [128, 160, 192, 224]
    KB = [0, 32, 64, 96]
    QF = [128, 144]
    GX = 36

    A("s_cmp_ge_u32 s2, 256"); A("s_cbranch_scc1 L_end")
    A("s_load_dwordx16 s[8:23], s[0:1], 0")
    A("s_load_dwordx8 s[24:31], s[0:1], 64")
    A("s_load_dwordx4 s[32:35], s[0:1], 96")
    A(f"v_lshrrev_b32 v{vT0}, 6, v0")
    A(f"v_and_b32 v{vL}, 63, v0")
    A(f"v_readfirstlane_b32 s3, v{vT0}")
    A(f"v_lshrrev_b32 v{vT0}, 2, v{vL}")
    A(f"v_and_b32 v{vT1}, 3, v{vL}")
    A(f"v_lshlrev_b32 v{vWq}, 17, v{vT0}")
    A(f"v_lshl_add_u32 v{vWq}, v{vT1}, 4, v{vWq}")
    A(f"v_lshlrev_b32 v{vX}, 5, v{vT0}")
    A(f"v_lshlrev_b32 v{vL16}, 4, v{vL}")
    A(f"v_lshlrev_b32 v{vL32}, 5, v{vL}")
    A(f"v_and_b32 v{vT0}, 3, v{vT0}")
    A(f"v_lshl_add_u32 v{vT0}, v{vT1}, 2, v{vT0}")
    A(f"v_lshrrev_b32 v{vT2}, 4, v{vL}")
    A(f"v_lshlrev_b32 v{vK}, 8, v{vT0}")
    A(f"v_lshl_add_u32 v{vK}, v{vT2}, 4, v{vK}")
    A(f"v_and_b32 v{vT3}, 15, v{vL}")
    A(f"v_lshlrev_b32 v{vWo}, 12, v{vT2}")
    A(f"v_lshl_add_u32 v{vWo}, v{vT3}, 4, v{vWo}")
    A(f"s_lshr_b32 s{sB}, s2, 7")
    A(f"s_bfe_u32 s{sHKV}, s2, 0x20005")
    A(f"s_and_b32 s{sS}, s2, 31")
    A(f"s_and_b32 s{sT}, s{sS}, 7"); A(f"s_lshl_b32 s{sT}, s{sT}, 1"); A(f"s_bfe_u32 s{sT2}, s{sS}, 0x10003"); A(f"s_or_b32 s{sT}, s{sT}, s{sT2}")
    A(f"s_and_b32 s{sT2}, s{sS}, 16"); A(f"s_or_b32 s{sT}, s{sT}, s{sT2}")
    A(f"s_lshl_b32 s{sT}, s{sT}, 5"); A(f"s_lshl_b32 s{sT2}, s{sHKV}, 10"); A(f"s_add_u32 s{sCNT}, s{sT}, s{sT2}")
    A(f"s_lshl_b32 s{sWQ}, s{sCNT}, 1"); A(f"s_lshl_b32 s{sT}, s3, 21"); A(f"s_add_u32 s{sWQ}, s{sWQ}, s{sT}")
    A(f"s_lshl_b32 s{sKB}, s2, 18"); A(f"s_lshl_b32 s{sT}, s3, 13"); A(f"s_add_u32 s{sKB}, s{sKB}, s{sT}")
    A(f"s_lshr_b32 s{sKA}, s2, 5"); A(f"s_lshl_b32 s{sKA}, s{sKA}, 23"); A(f"s_lshl_b32 s{sT2}, s{sS}, 15"); A(f"s_add_u32 s{sKA}, s{sKA}, s{sT2}")
    A(f"s_add_u32 s{sKA}, s{sKA}, s{sT}"); A(f"s_add_u32 s{sKA}, s{sKA}, {28672*256}")
    A(f"s_mov_b32 s{sPLO}, 0x05040100"); A(f"s_mov_b32 s{sPHI}, 0x07060302")
    A.wait_lg()
    def srd(d, p, size):
        A(f"s_mov_b32 s{d}, s{p}"); A(f"s_mov_b32 s{d+1}, s{p+1}"); A(f"s_mov_b32 s{d+2}, {size}"); A(f"s_mov_b32 s{d+3}, 0x20000")
    srd(XS, 8, 4096)
    A(f"s_cmp_eq_u32 s{sB}, 0")
    A(f"s_cselect_b32 s{WQ}, s14, s24"); A(f"s_cselect_b32 s{WQ+1}, s15, s25"); A(f"s_mov_b32 s{WQ+2}, 0x800000"); A(f"s_mov_b32 s{WQ+3}, 0x20000")
    A(f"s_lshl_b32 s{sT}, s3, 9")
    tX = []
    for bb in range(2):
        for h in range(2):
            tX.append(A(f"buffer_load_dwordx4 {vr(X+8*bb+4*h)}, v{vX}, {sr(XS)}, s{sT} offen offset:{bb*2048+h*16}"))
    W = VB[2]
    tW = []
    for t in range(16):
        if t: A(f"s_add_u32 s{sWQ}, s{sWQ}, 8192")
        tW.append(A(f"buffer_load_dwordx4 {vr(W+4*t)}, v{vWq}, {sr(WQ)}, s{sWQ} offen {polw}"))
    srd(AK, 10, 1 << 26); srd(AV, 12, 1 << 26); srd(BK, 20, 1 << 26); srd(BV, 22, 1 << 26)
    srd(WS, 34, WS_BYTES); srd(GW, 28, 2048); srd(WOA, 16, 1 << 23); srd(WOB, 26, 1 << 23); srd(OUT, 30, 4096)
    stamp()
    A(f"v_mov_b32 v{vT0}, 0")
    tE = A(f"buffer_load_dword v{vE}, v{vT0}, {sr(WS)}, 0 offen sc1")
    A(f"s_lshl_b32 s{sT}, s{sB}, 11")
    tG = []
    for h in range(2):
        tG.append(A(f"buffer_load_dwordx4 {vr(GX+4*h)}, v{vL32}, {sr(XS)}, s{sT} offen offset:{h*16}"))
        tG.append(A(f"buffer_load_dwordx4 {vr(GX+8+4*h)}, v{vL32}, {sr(GW)}, 0 offen offset:{h*16}"))

    tK, tV = {}, {}
    def issueK(t):
        srdk, base = (AK, sKA) if t == 0 else (BK, sKB)
        off = 0 if t == 0 else (t - 1) * 32768
        for u in range(2):
            A(f"s_add_u32 s{sT}, s{base}, {off + u*4096}")
            for kk in range(4):
                tK[t] = A(f"buffer_load_dwordx4 {ar(KB[t%4]+16*u+4*kk)}, v{vK}, {sr(srdk)}, s{sT} offen offset:{kk*64} {pol}")
    def issueV(t):
        srdv, base = (AV, sKA) if t == 0 else (BV, sKB)
        off = 0 if t == 0 else (t - 1) * 32768
        for u in range(2):
            A(f"s_add_u32 s{sT}, s{base}, {off + u*4096}")
            for e in range(4):
                tV[t] = A(f"buffer_load_dwordx4 {vr(VB[t%4]+16*u+4*e)}, v{vL16}, {sr(srdv)}, s{sT} offen offset:{e*1024} {pol}")
    issueK(0); issueV(0); issueK(1); issueV(1)
    A(f"s_mov_b32 s{sL2E}, {LOG2E:#x}"); A(f"s_mov_b32 s{sSCP}, {SCALE:#x}"); A(f"s_mov_b32 s{sSCP+1}, {SCALE:#x}")
    A(f"s_mov_b32 s{sM12}, 0xfff"); A(f"s_mov_b32 s{sHI16}, 0xffff0000")
    A(f"s_lshl_b32 s{sT}, s{sB}, 5"); A(f"s_add_u32 s{sT}, s{sT}, s{sS}"); A(f"s_lshr_b32 s{sRB}, s{sT}, 1")
    A(f"s_lshl_b32 s{sT2}, s{sHKV}, 5"); A(f"s_add_u32 s{sRB}, s{sRB}, s{sT2}")
    A(f"s_lshl_b32 s{sWO}, s{sRB}, 16"); A(f"s_and_b32 s{sT}, s{sT}, 1"); A(f"s_lshl_b32 s{sT}, s{sT}, 10"); A(f"s_add_u32 s{sWO}, s{sWO}, s{sT}")
    A(f"s_lshl_b32 s{sT}, s3, 8"); A(f"s_add_u32 s{sWO}, s{sWO}, s{sT}")
    for c in range(16): A(f"v_mov_b32 v{ACC+c}, 0")
    Tq = 20
    for u in range(8):
        A.wait_vm(tW[2*u+1])
        for j in range(4):
            lo, hi = Tq + 2*j + 8*(u & 1), Tq + 2*j + 1 + 8*(u & 1)
            A(f"v_perm_b32 v{lo}, v{W+8*u+4+j}, v{W+8*u+j}, s{sPLO}")
            A(f"v_perm_b32 v{hi}, v{W+8*u+4+j}, v{W+8*u+j}, s{sPHI}")
        for j in range(4):
            lo, hi = Tq + 2*j + 8*(u & 1), Tq + 2*j + 1 + 8*(u & 1)
            for bb in range(2):
                A(f"v_dot2c_f32_bf16 v{ACC+8*bb+2*j}, v{lo}, v{X+8*bb+u}")
                A(f"v_dot2c_f32_bf16 v{ACC+8*bb+2*j+1}, v{hi}, v{X+8*bb+u}")
    stamp()
    for c in range(8): A(f"v_permlane32_swap_b32 v{ACC+c}, v{ACC+8+c}")
    for c in range(8): A(f"v_add_f32 v{ACC+c}, v{ACC+c}, v{ACC+8+c}")
    for c in range(4): A(f"v_permlane16_swap_b32 v{ACC+c}, v{ACC+4+c}")
    for c in range(4): A(f"v_add_f32 v{ACC+c}, v{ACC+c}, v{ACC+4+c}")
    for rot in (8, 4):
        for c in range(4): A(f"v_add_f32_dpp v{ACC+c}, v{ACC+c}, v{ACC+c} row_ror:{rot} row_mask:0xf bank_mask:0xf")
    A(f"v_lshrrev_b32 v{vT0}, 5, v{vL}"); A(f"v_lshlrev_b32 v{vT0}, 7, v{vT0}")
    A(f"v_and_b32 v{vT1}, 3, v{vL}"); A(f"v_lshl_add_u32 v{vT0}, v{vT1}, 5, v{vT0}")
    A(f"v_and_b32 v{vT1}, 16, v{vL}"); A(f"v_add_u32 v{vT0}, v{vT0}, v{vT1}")
    A(f"s_lshl_b32 s{sT}, s3, 8"); A(f"v_add_u32 v{vT0}, s{sT}, v{vT0}")
    A(f"s_mov_b32 s{sEX}, 0x000f000f"); A(f"s_mov_b32 s{sEX+1}, 0x000f000f")
    A(f"s_mov_b64 exec, s[{sEX}:{sEX+1}]")
    A(f"ds_write_b128 v{vT0}, {vr(ACC)} offset:{QR}")
    A("s_mov_b64 exec, -1")
    A.wait_vm(tE)
    A(f"v_readfirstlane_b32 s{sE1}, v{vE}")
    A(f"s_add_u32 s{sE1}, s{sE1}, 1")
    A(f"s_and_b32 s{sTAG12}, s{sE1}, 0xfff"); A(f"s_and_b32 s{sTAG16}, s{sE1}, 0xffff")
    A.wait_lg()
    A("s_barrier")
    A(f"s_lshl_b32 s{sT}, s3, 6")
    A(f"v_and_b32 v{vT1}, 3, v{vL}"); A(f"v_lshlrev_b32 v{vT1}, 4, v{vT1}"); A(f"v_add_u32 v{vT0}, s{sT}, v{vT1}")
    for w in range(4): A(f"ds_read_b128 {vr(ACC+4*w)}, v{vT0} offset:{QR+256*w}")
    A(f"s_lshl_b32 s{sT}, s{sB}, 1"); A(f"s_lshr_b32 s{sT2}, s3, 1"); A(f"s_add_u32 s{sT}, s{sT}, s{sT2}"); A(f"s_lshl_b32 s{sT}, s{sT}, 14")
    A(f"s_lshl_b32 s{sT2}, s{sCNT}, 2"); A(f"s_add_u32 s{sT}, s{sT}, s{sT2}"); A(f"s_and_b32 s{sT2}, s3, 1"); A(f"s_lshl_b32 s{sT2}, s{sT2}, 6")
    A(f"s_add_u32 s{sT}, s{sT}, s{sT2}"); A(f"s_add_u32 s{sT}, s{sT}, {WS_Q}")
    A.wait_lg()
    for c in range(4): A(f"v_add_f32 v{ACC+c}, v{ACC+c}, v{ACC+4+c}")
    for c in range(4): A(f"v_add_f32 v{ACC+8+c}, v{ACC+8+c}, v{ACC+12+c}")
    for c in range(4): A(f"v_add_f32 v{ACC+c}, v{ACC+c}, v{ACC+8+c}")
    A(f"v_cvt_pk_bf16_f32 v{ACC+4}, v{ACC}, v{ACC+1}"); A(f"v_cvt_pk_bf16_f32 v{ACC+5}, v{ACC+2}, v{ACC+3}")
    A(f"v_mov_b32 v{vT2}, s{sTAG16}")
    A(f"v_lshl_or_b32 v{ACC+8}, v{ACC+4}, 16, v{vT2}"); A(f"v_and_or_b32 v{ACC+9}, v{ACC+4}, s{sHI16}, v{vT2}")
    A(f"v_lshl_or_b32 v{ACC+10}, v{ACC+5}, 16, v{vT2}"); A(f"v_and_or_b32 v{ACC+11}, v{ACC+5}, s{sHI16}, v{vT2}")
    A("s_mov_b64 exec, 15")
    A(f"buffer_store_dwordx4 {vr(ACC+8)}, v{vT1}, {sr(WS)}, s{sT} offen sc1")
    A("s_mov_b64 exec, -1")
    stamp()
    sQG = sWQ
    A(f"s_and_b32 s{sT}, s3, 2"); A(f"s_add_u32 s{sT}, s{sT}, s{sB}"); A(f"s_lshl_b32 s{sQG}, s{sT}, 14")
    A(f"s_lshl_b32 s{sT}, s{sHKV}, 12"); A(f"s_add_u32 s{sQG}, s{sQG}, s{sT}"); A(f"s_and_b32 s{sT}, s3, 1"); A(f"s_lshl_b32 s{sT}, s{sT}, 11")
    A(f"s_add_u32 s{sQG}, s{sQG}, s{sT}"); A(f"s_add_u32 s{sQG}, s{sQG}, {WS_Q}")
    def qg_issue(a):
        r = None
        for t in range(2):
            r = a(f"buffer_load_dwordx4 {vr(G+4*t)}, v{vL16}, {sr(WS)}, s{sQG} offen offset:{t*1024} sc1")
        return r
    tq = qg_issue(A)
    issueK(2); issueV(2); issueK(3); issueV(3)
    A.wait_vm(tG[-1])
    A("s_cmp_lg_u32 s3, 0"); A("s_cbranch_scc1 L_nogate")
    A(f"v_mov_b32 v{vT0}, 0"); A(f"s_mov_b32 s{sT}, 0x3f803f80"); A(f"v_mov_b32 v{vT3}, s{sT}")
    for d in range(8):
        A(f"v_lshlrev_b32 v{S}, 16, v{GX+d}"); A(f"v_and_b32 v{S+1}, s{sHI16}, v{GX+d}")
        A(f"v_lshlrev_b32 v{S+2}, 16, v{GX+8+d}"); A(f"v_and_b32 v{S+3}, s{sHI16}, v{GX+8+d}")
        A(f"v_mul_f32 v{S}, v{S}, v{S+2}"); A(f"v_mul_f32 v{S+1}, v{S+1}, v{S+3}")
        A(f"v_cvt_pk_bf16_f32 v{S+4}, v{S}, v{S+1}")
        A(f"v_dot2c_f32_bf16 v{vT0}, v{S+4}, v{vT3}")
    def allreduce(op, v, tmp, bits):
        for bit in bits:
            if bit == 0: A(f"{op}_dpp v{v}, v{v}, v{v} quad_perm:[1,0,3,2] row_mask:0xf bank_mask:0xf")
            elif bit == 1: A(f"{op}_dpp v{v}, v{v}, v{v} quad_perm:[2,3,0,1] row_mask:0xf bank_mask:0xf")
            elif bit == 2: A(f"{op}_dpp v{v}, v{v}, v{v} row_ror:4 row_mask:0xf bank_mask:0xf")
            elif bit == 3: A(f"{op}_dpp v{v}, v{v}, v{v} row_ror:8 row_mask:0xf bank_mask:0xf")
            elif bit == 4:
                A(f"v_mov_b32 v{tmp}, v{v}"); A(f"v_permlane16_swap_b32 v{v}, v{tmp}"); A(f"{op} v{v}, v{v}, v{tmp}")
            elif bit == 5:
                A(f"v_mov_b32 v{tmp}, v{v}"); A(f"v_permlane32_swap_b32 v{v}, v{tmp}"); A(f"{op} v{v}, v{v}, v{tmp}")
    allreduce("v_add_f32", vT0, vT1, [0, 1, 2, 3, 4, 5])
    A(f"v_cvt_pk_bf16_f32 v{vT0}, v{vT0}, v{vT0}"); A(f"v_and_b32 v{vT0}, s{sHI16}, v{vT0}")
    A(f"v_mul_f32 v{vT0}, s{sL2E}, v{vT0}"); A(f"v_exp_f32 v{vT0}, -v{vT0}"); A(f"v_add_f32 v{vT0}, 1.0, v{vT0}"); A(f"v_rcp_f32 v{vT0}, v{vT0}")
    A(f"v_cvt_pk_bf16_f32 v{vT0}, v{vT0}, v{vT0}"); A(f"v_and_b32 v{vT0}, s{sHI16}, v{vT0}")
    A(f"v_sub_f32 v{vT1}, 1.0, v{vT0}"); A(f"v_cvt_pk_bf16_f32 v{vT1}, v{vT1}, v{vT1}"); A(f"v_and_b32 v{vT1}, s{sHI16}, v{vT1}")
    A(f"v_readfirstlane_b32 s{sG}, v{vT0}"); A(f"v_readfirstlane_b32 s{sOMG}, v{vT1}")
    A.label("L_nogate")
    A.nop(4)
    A.wait_vm(tq)
    def tagcheck(a, regs, tag, mask_s):
        for r in regs: a(f"v_xor_b32 v{r}, s{tag}, v{r}")
        a(f"v_or_b32 v{vT0}, v{regs[0]}, v{regs[1]}")
        for k in range(2, len(regs), 2):
            a(f"v_or3_b32 v{vT0}, v{vT0}, v{regs[k]}, v{regs[k+1]}")
        a(f"v_and_b32 v{vT0}, {mask_s}, v{vT0}")
        a(f"v_cmp_ne_u32 vcc, 0, v{vT0}")
    def poll_slow(name, issue, regs, tag, mask_s, dbgslot):
        B = Asm(); B.check = False
        B.label(f"L_slow_{name}")
        B(f"s_mov_b32 s{sCNT}, 0")
        B.label(f"L_slow_{name}_loop")
        B.nop(8)
        issue(B)
        B("s_waitcnt vmcnt(0)")
        tagcheck(B, regs, tag, mask_s)
        B(f"s_add_u32 s{sCNT}, s{sCNT}, 1")
        B.nop(4)
        B(f"s_cbranch_vccz L_back_{name}")
        B(f"s_cmp_lt_u32 s{sCNT}, 0x4000")
        B(f"s_cbranch_scc1 L_slow_{name}_loop")
        B(f"s_branch L_back_{name}")
        slow.append(B.text())
        A.nop(4)
        A(f"s_cbranch_vccnz L_slow_{name}")
        A.label(f"L_back_{name}")
    qregs = list(range(G, G + 8))
    tagcheck(A, qregs, sTAG16, "0xffff")
    poll_slow("q", qg_issue, qregs, sTAG16, "0xffff", 0)
    stamp()
    for t in range(2):
        A(f"v_perm_b32 v{G+4*t}, v{G+4*t+1}, v{G+4*t}, s{sPHI}")
        A(f"v_perm_b32 v{G+4*t+1}, v{G+4*t+3}, v{G+4*t+2}, s{sPHI}")
    A(f"v_lshrrev_b32 v{vT0}, 5, v{vL}"); A(f"v_mul_u32_u24 v{vT0}, {QLH}, v{vT0}")
    A(f"v_and_b32 v{vT1}, 31, v{vL}"); A(f"v_lshl_add_u32 v{vT0}, v{vT1}, 3, v{vT0}")
    A(f"s_lshr_b32 s{sT}, s3, 1"); A(f"s_mul_i32 s{sT}, s{sT}, {QLB}"); A(f"s_and_b32 s{sT2}, s3, 1"); A(f"s_mul_i32 s{sT2}, s{sT2}, {4*QLH}")
    A(f"s_add_u32 s{sT}, s{sT}, s{sT2}"); A(f"v_add_u32 v{vT0}, s{sT}, v{vT0}")
    for t in range(2):
        A(f"ds_write_b64 v{vT0}, v[{G+4*t}:{G+4*t+1}] offset:{QL+2*QLH*t}")
    A(f"v_and_b32 v{vT1}, 7, v{vL}"); A(f"v_mul_u32_u24 v{vT1}, {QLH}, v{vT1}")
    A(f"v_lshrrev_b32 v{vT2}, 4, v{vL}"); A(f"v_lshl_add_u32 v{vT1}, v{vT2}, 4, v{vT1}")
    A.wait_lg()
    A("s_barrier")
    for br in range(2):
        for kk in range(4):
            A(f"ds_read_b128 {ar(QF[br]+4*kk)}, v{vT1} offset:{QL+br*QLB+kk*64}")
    vOW, vSW = 17, 18
    A(f"v_and_b32 v{vT0}, 7, v{vL}"); A(f"v_mul_u32_u24 v{vOW}, {MLH}, v{vT0}"); A(f"v_lshl_add_u32 v{vOW}, v{vT2}, 7, v{vOW}")
    A(f"s_mul_i32 s{sT}, s3, {MLW}"); A(f"v_add_u32 v{vOW}, s{sT}, v{vOW}")
    A(f"s_lshl_b32 s{sT}, s3, 3"); A(f"v_lshlrev_b32 v{vSW}, 5, v{vT0}"); A(f"v_add_u32 v{vSW}, s{sT}, v{vSW}")
    A.wait_lg()
    stamp()

    tWO = {}
    def issueWO(br, buf):
        for e in range(8):
            A(f"s_add_u32 s{sT}, s{sWO}, {(8*(e&3)+(e>>2))*2048}")
            tWO[br] = A(f"buffer_load_dwordx4 {vr(VB[buf]+4*e)}, v{vWo}, {sr(WOA if br == 0 else WOB)}, s{sT} offen {polw}")

    def tile(t):
        br = 0 if t == 0 else 1
        first = t <= 1
        kb, vb = KB[t % 4], VB[t % 4]
        A.wait_vm(tK[t])
        for kk in range(4):
            for u in range(2):
                c = "0" if kk == 0 else vr(S+4*u)
                A(f"v_mfma_f32_16x16x32_bf16 {vr(S+4*u)}, {ar(kb+16*u+4*kk)}, {ar(QF[br]+4*kk)}, {c}")
        if t + 4 <= 8: issueK(t + 4)
        for i in range(4): A(f"v_cvt_pk_bf16_f32 v{C+i}, v{S+2*i}, v{S+2*i+1}")
        for i in range(4):
            A(f"v_lshlrev_b32 v{S+2*i}, 16, v{C+i}"); A(f"v_and_b32 v{S+2*i+1}, s{sHI16}, v{C+i}")
        for i in range(4): A(f"v_pk_mul_f32 v[{S+2*i}:{S+2*i+1}], v[{S+2*i}:{S+2*i+1}], s[{sSCP}:{sSCP+1}]")
        for i in range(4): A(f"v_cvt_pk_bf16_f32 v{C+i}, v{S+2*i}, v{S+2*i+1}")
        for i in range(4):
            A(f"v_lshlrev_b32 v{S+2*i}, 16, v{C+i}"); A(f"v_and_b32 v{S+2*i+1}, s{sHI16}, v{C+i}")
        A(f"v_max3_f32 v{vT0}, v{S}, v{S+1}, v{S+2}"); A(f"v_max3_f32 v{vT1}, v{S+3}, v{S+4}, v{S+5}")
        A(f"v_max3_f32 v{vT0}, v{vT0}, v{S+6}, v{S+7}")
        if first: A(f"v_max_f32 v{vM}, v{vT0}, v{vT1}")
        else: A(f"v_max3_f32 v{vM}, v{vT0}, v{vT1}, v{vM}")
        allreduce("v_max_f32", vM, vT1, [5, 4])
        if not first: A(f"v_mov_b32 v{vT2}, v{vML}")
        A(f"v_mul_f32 v{vML}, s{sL2E}, v{vM}")
        if not first:
            A(f"v_sub_f32 v{vT2}, v{vT2}, v{vML}"); A(f"v_exp_f32 v{vAl}, v{vT2}")
        for i in range(8): A(f"v_fma_f32 v{S+i}, v{S+i}, s{sL2E}, -v{vML}")
        for i in range(8): A(f"v_exp_f32 v{S+i}, v{S+i}")
        if not first:
            for i in range(16): A(f"v_pk_mul_f32 v[{O+2*i}:{O+2*i+1}], v[{O+2*i}:{O+2*i+1}], v[{vAl}:{vAl+1}] op_sel_hi:[1,0]")
        for i in range(4): A(f"v_cvt_pk_bf16_f32 v{P+i}, v{S+2*i}, v{S+2*i+1}")
        A(f"v_add_f32 v{vT0}, v{S}, v{S+1}"); A(f"v_add_f32 v{vT1}, v{S+2}, v{S+3}")
        A(f"v_add_f32 v{vT2}, v{S+4}, v{S+5}"); A(f"v_add_f32 v{vT3}, v{S+6}, v{S+7}")
        A(f"v_add_f32 v{vT0}, v{vT0}, v{vT1}"); A(f"v_add_f32 v{vT2}, v{vT2}, v{vT3}")
        if first: A(f"v_add_f32 v{vLs}, v{vT0}, v{vT2}")
        else:
            A(f"v_add_f32 v{vT0}, v{vT0}, v{vT2}"); A(f"v_fma_f32 v{vLs}, v{vLs}, v{vAl}, v{vT0}")
        A.wait_vm(tV[t])
        def perms(j):
            tb = T + 8 * (j & 1)
            for m in range(4):
                A(f"v_perm_b32 v{tb+m}, v{vb+8*m+4+j}, v{vb+8*m+j}, s{sPLO}")
                A(f"v_perm_b32 v{tb+4+m}, v{vb+8*m+4+j}, v{vb+8*m+j}, s{sPHI}")
        def pv(j):
            tb = T + 8 * (j & 1)
            for h in range(2):
                d = 2 * j + h
                c = "0" if first else vr(O+4*d)
                A(f"v_mfma_f32_16x16x32_bf16 {vr(O+4*d)}, {vr(tb+4*h)}, {vr(P)}, {c}")
        perms(0); perms(1); pv(0); perms(2); pv(1); perms(3); pv(2)
        if t + 4 <= 8: issueV(t + 4)
        elif t == 5: issueWO(0, 1)
        elif t == 6: issueWO(1, 2)
        pv(3)
        if t == 0 or t == 8:
            allreduce("v_add_f32", vLs, vT1, [5, 4])
            A(f"v_mov_b32 v{vT1}, v{vM}"); A(f"v_mov_b32 v{vT2}, v{vLs}")
            A(f"s_mov_b32 s{sEX}, 0x00ff00ff"); A(f"s_mov_b32 s{sEX+1}, 0x00ff00ff")
            A(f"s_mov_b64 exec, s[{sEX}:{sEX+1}]")
            for d in range(8): A(f"ds_write_b128 v{vOW}, {vr(O+4*d)} offset:{ML+br*MLB+16*d}")
            A("s_mov_b64 exec, 0xff")
            A(f"ds_write_b64 v{vSW}, v[{vT1}:{vT2}] offset:{STL+br*256}")
            A("s_mov_b64 exec, -1")
    for t in range(9):
        tile(t)
        if t in (0, 4): stamp()
    stamp()
    A.wait_lg()
    A("s_barrier")
    vMR, vSR, vGO, vGS = 17, 18, 19, 16
    A(f"v_lshrrev_b32 v{vT0}, 5, v{vL}"); A(f"s_lshl_b32 s{sT}, s3, 1"); A(f"v_add_u32 v{vT0}, s{sT}, v{vT0}")
    A(f"v_mul_u32_u24 v{vMR}, {MLH}, v{vT0}"); A(f"v_and_b32 v{vT1}, 31, v{vL}"); A(f"v_lshl_add_u32 v{vMR}, v{vT1}, 4, v{vMR}")
    A(f"v_lshlrev_b32 v{vSR}, 5, v{vT0}")
    MB = [VB[3], O]
    toks = {}
    for br in (1, 0):
        base = MB[br]
        for h in range(2): A(f"ds_read_b128 {vr(base+16+4*h)}, v{vSR} offset:{STL+br*256+16*h}")
        for w in range(4): toks[br] = A(f"ds_read_b128 {vr(base+4*w)}, v{vMR} offset:{ML+br*MLB+w*MLW}")
    A(f"v_lshrrev_b32 v{vT1}, 3, v{vL}"); A(f"v_and_b32 v{vT1}, 3, v{vT1}"); A(f"v_lshl_add_u32 v{vT1}, v{vT0}, 2, v{vT1}")
    A(f"v_lshlrev_b32 v{vGO}, 12, v{vT1}"); A(f"v_and_b32 v{vT1}, 7, v{vL}"); A(f"v_lshl_add_u32 v{vGO}, v{vT1}, 4, v{vGO}")
    A(f"v_lshlrev_b32 v{vGS}, 8, v{vT0}")
    sP1, sST = sKB, sKA
    A(f"s_lshr_b32 s{sT}, s2, 5"); A(f"s_lshl_b32 s{sP1}, s{sT}, 17"); A(f"s_lshl_b32 s{sT2}, s{sS}, 7"); A(f"s_add_u32 s{sP1}, s{sP1}, s{sT2}"); A(f"s_add_u32 s{sP1}, s{sP1}, {WS_P1}")
    A(f"s_lshl_b32 s{sST}, s{sT}, 11"); A(f"s_lshl_b32 s{sT2}, s{sS}, 3"); A(f"s_add_u32 s{sST}, s{sST}, s{sT2}"); A(f"s_add_u32 s{sST}, s{sST}, {WS_ST}")
    A(f"v_mov_b32 v{X}, s{sTAG12}")
    vTAG = X
    for br in (1, 0):
        base = MB[br]; st = base + 16
        A.wait_lg(toks[br])
        A(f"v_max3_f32 v{vT0}, v{st}, v{st+2}, v{st+4}"); A(f"v_max_f32 v{vT0}, v{vT0}, v{st+6}")
        A(f"v_mul_f32 v{vT1}, s{sL2E}, v{vT0}")
        for w in range(4): A(f"v_mul_f32 v{st+2*w}, s{sL2E}, v{st+2*w}")
        for w in range(4): A(f"v_sub_f32 v{st+2*w}, v{st+2*w}, v{vT1}")
        for w in range(4): A(f"v_exp_f32 v{st+2*w}, v{st+2*w}")
        for c in range(4): A(f"v_mul_f32 v{base+c}, v{base+c}, v{st}")
        A(f"v_mul_f32 v{vT1}, v{st+1}, v{st}")
        for w in range(1, 4):
            for c in range(4): A(f"v_fmac_f32 v{base+c}, v{base+4*w+c}, v{st+2*w}")
            A(f"v_fmac_f32 v{vT1}, v{st+2*w+1}, v{st+2*w}")
        for c in range(4): A(f"v_bfi_b32 v{base+4+c}, s{sM12}, v{vTAG}, v{base+c}")
        A(f"v_bfi_b32 v{base+8}, s{sM12}, v{vTAG}, v{vT0}"); A(f"v_bfi_b32 v{base+9}, s{sM12}, v{vTAG}, v{vT1}")
        A(f"s_add_u32 s{sT}, s{sP1}, {br << 20}")
        A(f"buffer_store_dwordx4 {vr(base+4)}, v{vGO}, {sr(WS)}, s{sT} offen sc1")
        A(f"s_add_u32 s{sT}, s{sST}, {br << 14}")
        A(f"s_mov_b32 s{sEX}, 1"); A(f"s_mov_b32 s{sEX+1}, 1"); A(f"s_mov_b64 exec, s[{sEX}:{sEX+1}]")
        A(f"buffer_store_dwordx2 v[{base+8}:{base+9}], v{vGS}, {sr(WS)}, s{sT} offen sc1")
        A("s_mov_b64 exec, -1")
    stamp()
    sGP, sGS = sKB, sKA
    A(f"s_lshr_b32 s{sT}, s3, 1"); A(f"s_lshl_b32 s{sGP}, s{sT}, 19"); A(f"s_lshl_b32 s{sT2}, s{sRB}, 12"); A(f"s_add_u32 s{sGP}, s{sGP}, s{sT2}")
    A(f"s_and_b32 s{sT2}, s3, 1"); A(f"s_lshl_b32 s{sT2}, s{sT2}, 6"); A(f"s_add_u32 s{sGP}, s{sGP}, s{sT2}"); A(f"s_add_u32 s{sGP}, s{sGP}, {WS_P1}")
    A(f"s_lshl_b32 s{sGS}, s{sT}, 13"); A(f"s_lshr_b32 s{sT2}, s{sRB}, 2"); A(f"s_lshl_b32 s{sT2}, s{sT2}, 8"); A(f"s_add_u32 s{sGS}, s{sGS}, s{sT2}"); A(f"s_add_u32 s{sGS}, s{sGS}, {WS_ST}")
    vA1, vA2 = 17, 18
    A(f"v_lshrrev_b32 v{vT0}, 2, v{vL}"); A(f"v_lshlrev_b32 v{vA1}, 7, v{vT0}"); A(f"v_and_b32 v{vT1}, 3, v{vL}"); A(f"v_lshl_add_u32 v{vA1}, v{vT1}, 4, v{vA1}")
    A(f"v_lshlrev_b32 v{vA2}, 3, v{vT0}")
    GB = [ACC, G]
    sGP2, sGS2 = sWQ, sSC
    A(f"s_add_u32 s{sGP2}, s{sGP}, {1 << 20}"); A(f"s_add_u32 s{sGS2}, s{sGS}, {1 << 14}")
    def pg_issue(a):
        r = None
        for br in (1, 0):
            gp, gs = (sGP, sGS) if br == 0 else (sGP2, sGS2)
            for t in range(2):
                a(f"buffer_load_dwordx4 {vr(GB[br]+4*t)}, v{vA1}, {sr(WS)}, s{gp} offen offset:{t*2048} sc1")
                r = a(f"buffer_load_dwordx2 v[{GB[br]+8+2*t}:{GB[br]+9+2*t}], v{vA2}, {sr(WS)}, s{gs} offen offset:{t*128} sc1")
        return r
    tp = pg_issue(A)
    WT = [VB[3], VB[0]]
    for br in range(2):
        A.wait_vm(tWO[br])
        src = VB[1 + br]
        for j in range(4):
            for m in range(4):
                A(f"v_perm_b32 v{WT[br]+8*j+m}, v{src+8*m+4+j}, v{src+8*m+j}, s{sPLO}")
                A(f"v_perm_b32 v{WT[br]+8*j+4+m}, v{src+8*m+4+j}, v{src+8*m+j}, s{sPHI}")
    stamp()
    A.wait_vm(tp)
    pregs = list(range(GB[0], GB[0] + 12)) + list(range(GB[1], GB[1] + 12))
    tagcheck(A, pregs, sTAG12, f"s{sM12}")
    poll_slow("p", pg_issue, pregs, sTAG12, f"s{sM12}", 1)
    stamp()
    for br in range(2):
        g = GB[br]; st = g + 8
        tm, tl, tt = S + 4 * br, S + 4 * br + 1, S + 4 * br + 2
        A(f"v_max_f32 v{tm}, v{st}, v{st+2}")
        allreduce("v_max_f32", tm, tt, [2, 3, 4, 5])
        A(f"v_mul_f32 v{tm}, s{sL2E}, v{tm}")
        for t in range(2): A(f"v_mul_f32 v{st+2*t}, s{sL2E}, v{st+2*t}")
        for t in range(2): A(f"v_sub_f32 v{st+2*t}, v{st+2*t}, v{tm}")
        for t in range(2): A(f"v_exp_f32 v{st+2*t}, v{st+2*t}")
        for c in range(4): A(f"v_mul_f32 v{g+c}, v{g+c}, v{st}")
        A(f"v_mul_f32 v{tl}, v{st+1}, v{st}")
        for c in range(4): A(f"v_fmac_f32 v{g+c}, v{g+4+c}, v{st+2}")
        A(f"v_fmac_f32 v{tl}, v{st+3}, v{st+2}")
        for v in [g, g + 1, g + 2, g + 3, tl]: allreduce("v_add_f32", v, tt, [2, 3, 4, 5])
        A(f"v_rcp_f32 v{tl}, v{tl}")
        for c in range(4): A(f"v_mul_f32 v{g+c}, v{g+c}, v{tl}")
        A(f"v_cvt_pk_bf16_f32 v{g+4}, v{g}, v{g+1}"); A(f"v_cvt_pk_bf16_f32 v{g+5}, v{g+2}, v{g+3}")
    A(f"v_and_b32 v{vT0}, 3, v{vL}"); A(f"v_lshlrev_b32 v{vT0}, 3, v{vT0}"); A(f"s_lshl_b32 s{sT}, s3, 5"); A(f"v_add_u32 v{vT0}, s{sT}, v{vT0}")
    A("s_mov_b64 exec, 15")
    for br in range(2): A(f"ds_write_b64 v{vT0}, v[{GB[br]+4}:{GB[br]+5}] offset:{OL+br*128}")
    A("s_mov_b64 exec, -1")
    A(f"v_bfe_u32 v{vT0}, v{vL}, 3, 1"); A(f"v_lshlrev_b32 v{vT0}, 6, v{vT0}"); A(f"v_lshrrev_b32 v{vT1}, 4, v{vL}"); A(f"v_lshl_add_u32 v{vT0}, v{vT1}, 4, v{vT0}")
    A.wait_lg()
    A("s_barrier")
    for br in range(2): A(f"ds_read_b128 {vr(P+4*br)}, v{vT0} offset:{OL+br*128}")
    A(f"v_lshrrev_b32 v{vT0}, 5, v{vL}"); A(f"v_lshlrev_b32 v{vA1}, 12, v{vT0}"); A(f"v_and_b32 v{vT0}, 15, v{vL}"); A(f"v_lshl_add_u32 v{vA1}, v{vT0}, 5, v{vA1}")
    A(f"v_and_b32 v{vT0}, 16, v{vL}"); A(f"v_add_u32 v{vA1}, v{vA1}, v{vT0}")
    A(f"v_cmp_ne_u32 vcc, 0, v{vT0}")
    A(f"s_lshl_b32 s{sGP}, s{sRB}, 13"); A(f"s_and_b32 s{sT}, s{sS}, 1"); A(f"s_lshl_b32 s{sT}, s{sT}, 11"); A(f"s_add_u32 s{sGP}, s{sGP}, s{sT}")
    A(f"s_lshl_b32 s{sT}, s3, 9"); A(f"s_add_u32 s{sGP}, s{sGP}, s{sT}"); A(f"s_add_u32 s{sGP}, s{sGP}, {WS_P2}")
    A.wait_lg()
    DO = [VB[1], VB[2]]
    for br in (1, 0):
        for d in range(8):
            A(f"v_mfma_f32_16x16x32_bf16 {vr(DO[br]+4*d)}, {vr(P+4*br)}, {vr(WT[br]+4*d)}, 0")
    for br in (1, 0):
        for c in range(4): A(f"v_cndmask_b32 v{T+4*br+c}, v{DO[br]+4*c}, v{DO[br]+16+4*c}, vcc")
        for c in range(4): A(f"v_bfi_b32 v{T+4*br+c}, s{sM12}, v{vTAG}, v{T+4*br+c}")
        A(f"s_add_u32 s{sT}, s{sGP}, {br << 20}")
        A(f"buffer_store_dwordx4 {vr(T+4*br)}, v{vA1}, {sr(WS)}, s{sT} offen sc1")
    stamp()
    def write_stamps():
        if not stamps: return
        A.wait_lg(); A("s_waitcnt lgkmcnt(0)")
        A(f"s_lshl_b32 s{sT}, s2, 2"); A(f"s_add_u32 s{sT}, s{sT}, s3"); A(f"s_lshl_b32 s{sT}, s{sT}, 7"); A(f"s_add_u32 s{sT}, s{sT}, {WS_STAMP}")
        A(f"s_getreg_b32 s{sT2}, hwreg(HW_REG_XCC_ID)")
        A(f"v_mov_b32 v{vT0}, 0"); A("s_mov_b64 exec, 1")
        n = 12
        for k in range(0, n, 2):
            for c in range(4): A(f"v_mov_b32 v{VB[0]+c}, s{ST0+2*k+c}")
            A(f"buffer_store_dwordx4 {vr(VB[0])}, v{vT0}, {sr(WS)}, s{sT} offen offset:{k*8}")
        A("s_memrealtime s[8:9]"); A("s_waitcnt lgkmcnt(0)"); A.smem_pending = set()
        A(f"v_mov_b32 v{VB[0]}, s8"); A(f"v_mov_b32 v{VB[0]+1}, s9"); A(f"v_mov_b32 v{VB[0]+2}, s{sT2}"); A(f"v_mov_b32 v{VB[0]+3}, 0")
        A(f"buffer_store_dwordx4 {vr(VB[0])}, v{vT0}, {sr(WS)}, s{sT} offen offset:{n*8}")
        A("s_mov_b64 exec, -1")
    A("s_cmp_lg_u32 s3, 0"); A("s_cbranch_scc1 L_fin")
    A(f"v_lshrrev_b32 v{vT0}, 1, v{vL}"); A(f"v_lshlrev_b32 v{vA1}, 13, v{vT0}"); A(f"v_and_b32 v{vT0}, 1, v{vL}"); A(f"v_lshl_add_u32 v{vA1}, v{vT0}, 4, v{vA1}")
    A(f"s_lshl_b32 s{sGP}, s{sB}, 12"); A(f"s_and_b32 s{sT}, s2, 127"); A(f"s_lshl_b32 s{sT}, s{sT}, 5"); A(f"s_add_u32 s{sGP}, s{sGP}, s{sT}"); A(f"s_add_u32 s{sGP}, s{sGP}, {WS_P2}")
    F = VB[1]
    def fg_issue(a):
        r = None
        for br in range(2):
            for t in range(4):
                a(f"s_add_u32 s{sT}, s{sGP}, {(br << 20) + (t << 18)}")
                r = a(f"buffer_load_dwordx4 {vr(F+16*br+4*t)}, v{vA1}, {sr(WS)}, s{sT} offen sc1")
        return r
    A.nop(8)
    tf = fg_issue(A)
    A.wait_vm(tf)
    fregs = list(range(F, F + 32))
    tagcheck(A, fregs, sTAG12, f"s{sM12}")
    poll_slow("f", fg_issue, fregs, sTAG12, f"s{sM12}", 2)
    for br in range(2):
        f = F + 16 * br
        for c in range(4): A(f"v_add_f32 v{f+c}, v{f+c}, v{f+4+c}")
        for c in range(4): A(f"v_add_f32 v{f+8+c}, v{f+8+c}, v{f+12+c}")
        for c in range(4): A(f"v_add_f32 v{f+c}, v{f+c}, v{f+8+c}")
        for c in range(4): allreduce("v_add_f32", f + c, vT1, [1, 2, 3, 4, 5])
        sg = sG if br == 0 else sOMG
        for h in range(2): A(f"v_cvt_pk_bf16_f32 v{f+4+h}, v{f+2*h}, v{f+2*h+1}")
        for h in range(2):
            A(f"v_lshlrev_b32 v{f+2*h}, 16, v{f+4+h}"); A(f"v_and_b32 v{f+2*h+1}, s{sHI16}, v{f+4+h}")
        for c in range(4): A(f"v_mul_f32 v{f+c}, s{sg}, v{f+c}")
        for h in range(2): A(f"v_cvt_pk_bf16_f32 v{f+4+h}, v{f+2*h}, v{f+2*h+1}")
        for h in range(2):
            A(f"v_lshlrev_b32 v{f+2*h}, 16, v{f+4+h}"); A(f"v_and_b32 v{f+2*h+1}, s{sHI16}, v{f+4+h}")
    for c in range(4): A(f"v_add_f32 v{F+c}, v{F+c}, v{F+16+c}")
    for h in range(2): A(f"v_cvt_pk_bf16_f32 v{F+4+h}, v{F+2*h}, v{F+2*h+1}")
    A(f"v_lshlrev_b32 v{vT0}, 3, v{vL}")
    A(f"s_lshl_b32 s{sT}, s2, 4")
    A("s_mov_b64 exec, 3")
    A(f"buffer_store_dwordx2 v[{F+4}:{F+5}], v{vT0}, {sr(OUT)}, s{sT} offen")
    A("s_mov_b64 exec, 1")
    A("s_cmp_lg_u32 s2, 0"); A("s_cbranch_scc1 L_noe")
    A(f"v_mov_b32 v{vT1}, s{sE1}")
    A(f"buffer_store_dword v{vT1}, v{vT0}, {sr(WS)}, 0 offen sc1")
    A.label("L_noe")
    A("s_mov_b64 exec, -1")
    A.label("L_fin")
    A.nop(8)
    write_stamps()
    A.label("L_end")
    A("s_endpgm")
    for s in slow: A.raw(s.rstrip())
    A.raw('.section .rodata,"a"'); A.raw(".p2align 6"); A.raw(f".amdhsa_kernel {NAME}")
    A.raw("  .amdhsa_next_free_vgpr 512"); A.raw("  .amdhsa_next_free_sgpr 102"); A.raw("  .amdhsa_accum_offset 256")
    A.raw("  .amdhsa_group_segment_fixed_size 0"); A.raw("  .amdhsa_kernarg_size 112"); A.raw("  .amdhsa_user_sgpr_count 2")
    A.raw("  .amdhsa_user_sgpr_kernarg_segment_ptr 1"); A.raw("  .amdhsa_system_sgpr_workgroup_id_x 1")
    A.raw("  .amdhsa_float_denorm_mode_32 3")
    A.raw(".end_amdhsa_kernel")
    return A.text()

if __name__ == "__main__":
    open("v1_nt.s", "w").write(gen())
    open("v1_nt_st.s", "w").write(gen(stamps=True))
    open("v1_def.s", "w").write(gen(pol=""))
```

```python
import sys
sys.path.insert(0, "gen")
from asmlib import Asm

NAME = "gated_mix__sliding_block_cached__gqa_block_cached__decode_kernel"
REF = "gated_mix__sliding_block_cached__gqa_block_cached__decode.s.ref"
WS_BYTES = 302000128
WS_E, WS_Q, WS_ST, WS_P1, WS_P2, WS_STAMP = 0, 0x10000, 0x20000, 0x100000, 0x400000, 0x10000000
QL, QLB, QLH = 0, 2176, 272
QR = 4608
OL = 5632
STL = 6144
ML, MLB, MLW, MLH = 8192, 16896, 4224, 528
LDS_BYTES = 43008
LOG2E = 0x3fb8aa3b
SCALE = 0x3db504f3

def vr(b, n=4): return f"v[{b}:{b+n-1}]"
def ar(b, n=4): return f"a[{b}:{b+n-1}]"
def sr(b, n=4): return f"s[{b}:{b+n-1}]"

def gen(pol="nt", stamps=False, polw=None, stretch=None):
    polw = pol if polw is None else polw
    A = Asm()
    slow = []
    hdr = open(REF).read().split("; Override launch")[0].rstrip()
    A.raw(hdr)
    A.raw(f"; @launch grid=(256,1,1) block=(256,1,1) lds={LDS_BYTES}")
    A.raw('.amdgcn_target "amdgcn-amd-amdhsa--gfx950"')
    A.raw(".text"); A.raw(f".globl {NAME}"); A.raw(".p2align 8"); A.raw(f".type {NAME},@function"); A.raw(f"{NAME}:")
    AK, AV, BK, BV, WQ, WOA, WOB, WS, XS, GW, OUT = 36, 40, 44, 48, 52, 56, 60, 64, 68, 72, 76
    sB, sHKV, sS, sT, sT2 = 80, 81, 82, 83, 84
    sKB, sKA, sWQ, sWO, sTAG12, sTAG16, sPLO, sPHI = 85, 86, 87, 88, 89, 90, 91, 92
    sL2E, sSC, sM12, sG, sOMG, sHI16, sRB, sCNT = 93, 94, 95, 96, 97, 98, 99, 100
    sE1 = 101
    sSCP = 4
    sEX = 6
    ST0 = 8
    nst = [0]
    def stamp():
        if stamps:
            A(f"s_memrealtime s[{ST0+2*nst[0]}:{ST0+2*nst[0]+1}]"); nst[0] += 1
            A.smem_pending = set()
    vL, vK, vL16, vWq, vX, vWo, vL32, vT0, vT1, vT2, vT3 = 0, 1, 2, 3, 4, 5, 6, 7, 8, 9, 10
    vM, vML, vLs, vAl = 11, 12, 13, 14
    vE = 16
    S = 20
    P = 28
    C = 32
    T = 36
    X = 52
    ACC = 68
    G = 84
    O = 96
    VB = [128, 160, 192, 224]
    KB = [0, 32, 64, 96]
    QF = [128, 144]
    GX = 36

    A("s_cmp_ge_u32 s2, 256"); A("s_cbranch_scc1 L_end")
    A("s_load_dwordx16 s[8:23], s[0:1], 0")
    A("s_load_dwordx8 s[24:31], s[0:1], 64")
    A("s_load_dwordx4 s[32:35], s[0:1], 96")
    A(f"v_lshrrev_b32 v{vT0}, 6, v0")
    A(f"v_and_b32 v{vL}, 63, v0")
    A(f"v_readfirstlane_b32 s3, v{vT0}")
    A(f"v_lshrrev_b32 v{vT0}, 2, v{vL}")
    A(f"v_and_b32 v{vT1}, 3, v{vL}")
    A(f"v_lshlrev_b32 v{vWq}, 17, v{vT0}")
    A(f"v_lshl_add_u32 v{vWq}, v{vT1}, 4, v{vWq}")
    A(f"v_lshlrev_b32 v{vX}, 5, v{vT0}")
    A(f"v_lshlrev_b32 v{vL16}, 4, v{vL}")
    A(f"v_lshlrev_b32 v{vL32}, 5, v{vL}")
    A(f"v_and_b32 v{vT0}, 3, v{vT0}")
    A(f"v_lshl_add_u32 v{vT0}, v{vT1}, 2, v{vT0}")
    A(f"v_lshrrev_b32 v{vT2}, 4, v{vL}")
    A(f"v_lshlrev_b32 v{vK}, 8, v{vT0}")
    A(f"v_lshl_add_u32 v{vK}, v{vT2}, 4, v{vK}")
    A(f"v_and_b32 v{vT3}, 15, v{vL}")
    A(f"v_lshlrev_b32 v{vWo}, 12, v{vT2}")
    A(f"v_lshl_add_u32 v{vWo}, v{vT3}, 4, v{vWo}")
    A(f"s_lshr_b32 s{sB}, s2, 7")
    A(f"s_bfe_u32 s{sHKV}, s2, 0x20005")
    A(f"s_and_b32 s{sS}, s2, 31")
    A(f"s_and_b32 s{sT}, s{sS}, 7"); A(f"s_lshl_b32 s{sT}, s{sT}, 1"); A(f"s_bfe_u32 s{sT2}, s{sS}, 0x10003"); A(f"s_or_b32 s{sT}, s{sT}, s{sT2}")
    A(f"s_and_b32 s{sT2}, s{sS}, 16"); A(f"s_or_b32 s{sT}, s{sT}, s{sT2}")
    A(f"s_lshl_b32 s{sT}, s{sT}, 5"); A(f"s_lshl_b32 s{sT2}, s{sHKV}, 10"); A(f"s_add_u32 s{sCNT}, s{sT}, s{sT2}")
    A(f"s_lshl_b32 s{sWQ}, s{sCNT}, 1"); A(f"s_lshl_b32 s{sT}, s3, 21"); A(f"s_add_u32 s{sWQ}, s{sWQ}, s{sT}")
    A(f"s_lshl_b32 s{sKB}, s2, 18"); A(f"s_lshl_b32 s{sT}, s3, 13"); A(f"s_add_u32 s{sKB}, s{sKB}, s{sT}")
    A(f"s_lshr_b32 s{sKA}, s2, 5"); A(f"s_lshl_b32 s{sKA}, s{sKA}, 23"); A(f"s_lshl_b32 s{sT2}, s{sS}, 15"); A(f"s_add_u32 s{sKA}, s{sKA}, s{sT2}")
    A(f"s_add_u32 s{sKA}, s{sKA}, s{sT}"); A(f"s_add_u32 s{sKA}, s{sKA}, {28672*256}")
    A(f"s_mov_b32 s{sPLO}, 0x05040100"); A(f"s_mov_b32 s{sPHI}, 0x07060302")
    A.wait_lg()
    def srd(d, p, size):
        A(f"s_mov_b32 s{d}, s{p}"); A(f"s_mov_b32 s{d+1}, s{p+1}"); A(f"s_mov_b32 s{d+2}, {size}"); A(f"s_mov_b32 s{d+3}, 0x20000")
    srd(XS, 8, 4096)
    A(f"s_cmp_eq_u32 s{sB}, 0")
    A(f"s_cselect_b32 s{WQ}, s14, s24"); A(f"s_cselect_b32 s{WQ+1}, s15, s25"); A(f"s_mov_b32 s{WQ+2}, 0x800000"); A(f"s_mov_b32 s{WQ+3}, 0x20000")
    A(f"s_lshl_b32 s{sT}, s3, 9")
    tX = []
    for bb in range(2):
        for h in range(2):
            tX.append(A(f"buffer_load_dwordx4 {vr(X+8*bb+4*h)}, v{vX}, {sr(XS)}, s{sT} offen offset:{bb*2048+h*16}"))
    W = VB[2]
    tW = []
    for t in range(16):
        if t: A(f"s_add_u32 s{sWQ}, s{sWQ}, 8192")
        tW.append(A(f"buffer_load_dwordx4 {vr(W+4*t)}, v{vWq}, {sr(WQ)}, s{sWQ} offen {polw}"))
    srd(AK, 10, 1 << 26); srd(AV, 12, 1 << 26); srd(BK, 20, 1 << 26); srd(BV, 22, 1 << 26)
    srd(WS, 34, WS_BYTES); srd(GW, 28, 2048); srd(WOA, 16, 1 << 23); srd(WOB, 26, 1 << 23); srd(OUT, 30, 4096)
    stamp()
    A(f"v_mov_b32 v{vT0}, 0")
    tE = A(f"buffer_load_dword v{vE}, v{vT0}, {sr(WS)}, 0 offen sc1")
    A(f"s_lshl_b32 s{sT}, s{sB}, 11")
    tG = []
    for h in range(2):
        tG.append(A(f"buffer_load_dwordx4 {vr(GX+4*h)}, v{vL32}, {sr(XS)}, s{sT} offen offset:{h*16}"))
        tG.append(A(f"buffer_load_dwordx4 {vr(GX+8+4*h)}, v{vL32}, {sr(GW)}, 0 offen offset:{h*16}"))

    tK, tV = {}, {}
    def issueK(t):
        srdk, base = (AK, sKA) if t == 0 else (BK, sKB)
        off = 0 if t == 0 else (t - 1) * 32768
        for u in range(2):
            A(f"s_add_u32 s{sT}, s{base}, {off + u*4096}")
            for kk in range(4):
                tK[t] = A(f"buffer_load_dwordx4 {ar(KB[t%4]+16*u+4*kk)}, v{vK}, {sr(srdk)}, s{sT} offen offset:{kk*64} {pol}")
    def issueV(t):
        srdv, base = (AV, sKA) if t == 0 else (BV, sKB)
        off = 0 if t == 0 else (t - 1) * 32768
        for u in range(2):
            A(f"s_add_u32 s{sT}, s{base}, {off + u*4096}")
            for e in range(4):
                tV[t] = A(f"buffer_load_dwordx4 {vr(VB[t%4]+16*u+4*e)}, v{vL16}, {sr(srdv)}, s{sT} offen offset:{e*1024} {pol}")
    issueK(0); issueV(0); issueK(1); issueV(1)
    A(f"s_mov_b32 s{sL2E}, {LOG2E:#x}"); A(f"s_mov_b32 s{sSCP}, {SCALE:#x}"); A(f"s_mov_b32 s{sSCP+1}, {SCALE:#x}")
    A(f"s_mov_b32 s{sM12}, 0xfff"); A(f"s_mov_b32 s{sHI16}, 0xffff0000")
    A(f"s_lshl_b32 s{sT}, s{sB}, 5"); A(f"s_add_u32 s{sT}, s{sT}, s{sS}"); A(f"s_lshr_b32 s{sRB}, s{sT}, 1")
    A(f"s_lshl_b32 s{sT2}, s{sHKV}, 5"); A(f"s_add_u32 s{sRB}, s{sRB}, s{sT2}")
    A(f"s_lshl_b32 s{sWO}, s{sRB}, 16"); A(f"s_and_b32 s{sT}, s{sT}, 1"); A(f"s_lshl_b32 s{sT}, s{sT}, 10"); A(f"s_add_u32 s{sWO}, s{sWO}, s{sT}")
    A(f"s_lshl_b32 s{sT}, s3, 8"); A(f"s_add_u32 s{sWO}, s{sWO}, s{sT}")
    for c in range(16): A(f"v_mov_b32 v{ACC+c}, 0")
    Tq = 20
    for u in range(8):
        A.wait_vm(tW[2*u+1])
        for j in range(4):
            lo, hi = Tq + 2*j + 8*(u & 1), Tq + 2*j + 1 + 8*(u & 1)
            A(f"v_perm_b32 v{lo}, v{W+8*u+4+j}, v{W+8*u+j}, s{sPLO}")
            A(f"v_perm_b32 v{hi}, v{W+8*u+4+j}, v{W+8*u+j}, s{sPHI}")
        for j in range(4):
            lo, hi = Tq + 2*j + 8*(u & 1), Tq + 2*j + 1 + 8*(u & 1)
            for bb in range(2):
                A(f"v_dot2c_f32_bf16 v{ACC+8*bb+2*j}, v{lo}, v{X+8*bb+u}")
                A(f"v_dot2c_f32_bf16 v{ACC+8*bb+2*j+1}, v{hi}, v{X+8*bb+u}")
    stamp()
    for c in range(8): A(f"v_permlane32_swap_b32 v{ACC+c}, v{ACC+8+c}")
    for c in range(8): A(f"v_add_f32 v{ACC+c}, v{ACC+c}, v{ACC+8+c}")
    for c in range(4): A(f"v_permlane16_swap_b32 v{ACC+c}, v{ACC+4+c}")
    for c in range(4): A(f"v_add_f32 v{ACC+c}, v{ACC+c}, v{ACC+4+c}")
    for rot in (8, 4):
        for c in range(4): A(f"v_add_f32_dpp v{ACC+c}, v{ACC+c}, v{ACC+c} row_ror:{rot} row_mask:0xf bank_mask:0xf")
    A(f"v_lshrrev_b32 v{vT0}, 5, v{vL}"); A(f"v_lshlrev_b32 v{vT0}, 7, v{vT0}")
    A(f"v_and_b32 v{vT1}, 3, v{vL}"); A(f"v_lshl_add_u32 v{vT0}, v{vT1}, 5, v{vT0}")
    A(f"v_and_b32 v{vT1}, 16, v{vL}"); A(f"v_add_u32 v{vT0}, v{vT0}, v{vT1}")
    A(f"s_lshl_b32 s{sT}, s3, 8"); A(f"v_add_u32 v{vT0}, s{sT}, v{vT0}")
    A(f"s_mov_b32 s{sEX}, 0x000f000f"); A(f"s_mov_b32 s{sEX+1}, 0x000f000f")
    A(f"s_mov_b64 exec, s[{sEX}:{sEX+1}]")
    A(f"ds_write_b128 v{vT0}, {vr(ACC)} offset:{QR}")
    A("s_mov_b64 exec, -1")
    A.wait_vm(tE)
    A(f"v_readfirstlane_b32 s{sE1}, v{vE}")
    A(f"s_add_u32 s{sE1}, s{sE1}, 1")
    A(f"s_and_b32 s{sTAG12}, s{sE1}, 0xfff"); A(f"s_and_b32 s{sTAG16}, s{sE1}, 0xffff")
    A.wait_lg()
    A("s_barrier")
    A(f"s_lshl_b32 s{sT}, s3, 6")
    A(f"v_and_b32 v{vT1}, 3, v{vL}"); A(f"v_lshlrev_b32 v{vT1}, 4, v{vT1}"); A(f"v_add_u32 v{vT0}, s{sT}, v{vT1}")
    for w in range(4): A(f"ds_read_b128 {vr(ACC+4*w)}, v{vT0} offset:{QR+256*w}")
    A(f"s_lshl_b32 s{sT}, s{sB}, 1"); A(f"s_lshr_b32 s{sT2}, s3, 1"); A(f"s_add_u32 s{sT}, s{sT}, s{sT2}"); A(f"s_lshl_b32 s{sT}, s{sT}, 14")
    A(f"s_lshl_b32 s{sT2}, s{sCNT}, 2"); A(f"s_add_u32 s{sT}, s{sT}, s{sT2}"); A(f"s_and_b32 s{sT2}, s3, 1"); A(f"s_lshl_b32 s{sT2}, s{sT2}, 6")
    A(f"s_add_u32 s{sT}, s{sT}, s{sT2}"); A(f"s_add_u32 s{sT}, s{sT}, {WS_Q}")
    A.wait_lg()
    for c in range(4): A(f"v_add_f32 v{ACC+c}, v{ACC+c}, v{ACC+4+c}")
    for c in range(4): A(f"v_add_f32 v{ACC+8+c}, v{ACC+8+c}, v{ACC+12+c}")
    for c in range(4): A(f"v_add_f32 v{ACC+c}, v{ACC+c}, v{ACC+8+c}")
    A(f"v_cvt_pk_bf16_f32 v{ACC+4}, v{ACC}, v{ACC+1}"); A(f"v_cvt_pk_bf16_f32 v{ACC+5}, v{ACC+2}, v{ACC+3}")
    A(f"v_mov_b32 v{vT2}, s{sTAG16}")
    A(f"v_lshl_or_b32 v{ACC+8}, v{ACC+4}, 16, v{vT2}"); A(f"v_and_or_b32 v{ACC+9}, v{ACC+4}, s{sHI16}, v{vT2}")
    A(f"v_lshl_or_b32 v{ACC+10}, v{ACC+5}, 16, v{vT2}"); A(f"v_and_or_b32 v{ACC+11}, v{ACC+5}, s{sHI16}, v{vT2}")
    A("s_mov_b64 exec, 15")
    A(f"buffer_store_dwordx4 {vr(ACC+8)}, v{vT1}, {sr(WS)}, s{sT} offen sc1")
    A("s_mov_b64 exec, -1")
    stamp()
    sQG = sWQ
    A(f"s_and_b32 s{sT}, s3, 2"); A(f"s_add_u32 s{sT}, s{sT}, s{sB}"); A(f"s_lshl_b32 s{sQG}, s{sT}, 14")
    A(f"s_lshl_b32 s{sT}, s{sHKV}, 12"); A(f"s_add_u32 s{sQG}, s{sQG}, s{sT}"); A(f"s_and_b32 s{sT}, s3, 1"); A(f"s_lshl_b32 s{sT}, s{sT}, 11")
    A(f"s_add_u32 s{sQG}, s{sQG}, s{sT}"); A(f"s_add_u32 s{sQG}, s{sQG}, {WS_Q}")
    def qg_issue(a):
        r = None
        for t in range(2):
            r = a(f"buffer_load_dwordx4 {vr(G+4*t)}, v{vL16}, {sr(WS)}, s{sQG} offen offset:{t*1024} sc1")
        return r
    tq = qg_issue(A)
    issueK(2); issueV(2); issueK(3); issueV(3)
    A.wait_vm(tG[-1])
    A("s_cmp_lg_u32 s3, 0"); A("s_cbranch_scc1 L_nogate")
    A(f"v_mov_b32 v{vT0}, 0"); A(f"s_mov_b32 s{sT}, 0x3f803f80"); A(f"v_mov_b32 v{vT3}, s{sT}")
    for d in range(8):
        A(f"v_lshlrev_b32 v{S}, 16, v{GX+d}"); A(f"v_and_b32 v{S+1}, s{sHI16}, v{GX+d}")
        A(f"v_lshlrev_b32 v{S+2}, 16, v{GX+8+d}"); A(f"v_and_b32 v{S+3}, s{sHI16}, v{GX+8+d}")
        A(f"v_mul_f32 v{S}, v{S}, v{S+2}"); A(f"v_mul_f32 v{S+1}, v{S+1}, v{S+3}")
        A(f"v_cvt_pk_bf16_f32 v{S+4}, v{S}, v{S+1}")
        A(f"v_dot2c_f32_bf16 v{vT0}, v{S+4}, v{vT3}")
    def allreduce(op, v, tmp, bits):
        for bit in bits:
            if bit == 0: A(f"{op}_dpp v{v}, v{v}, v{v} quad_perm:[1,0,3,2] row_mask:0xf bank_mask:0xf")
            elif bit == 1: A(f"{op}_dpp v{v}, v{v}, v{v} quad_perm:[2,3,0,1] row_mask:0xf bank_mask:0xf")
            elif bit == 2: A(f"{op}_dpp v{v}, v{v}, v{v} row_ror:4 row_mask:0xf bank_mask:0xf")
            elif bit == 3: A(f"{op}_dpp v{v}, v{v}, v{v} row_ror:8 row_mask:0xf bank_mask:0xf")
            elif bit == 4:
                A(f"v_mov_b32 v{tmp}, v{v}"); A(f"v_permlane16_swap_b32 v{v}, v{tmp}"); A(f"{op} v{v}, v{v}, v{tmp}")
            elif bit == 5:
                A(f"v_mov_b32 v{tmp}, v{v}"); A(f"v_permlane32_swap_b32 v{v}, v{tmp}"); A(f"{op} v{v}, v{v}, v{tmp}")
    allreduce("v_add_f32", vT0, vT1, [0, 1, 2, 3, 4, 5])
    A(f"v_cvt_pk_bf16_f32 v{vT0}, v{vT0}, v{vT0}"); A(f"v_and_b32 v{vT0}, s{sHI16}, v{vT0}")
    A(f"v_mul_f32 v{vT0}, s{sL2E}, v{vT0}"); A(f"v_exp_f32 v{vT0}, -v{vT0}"); A(f"v_add_f32 v{vT0}, 1.0, v{vT0}"); A(f"v_rcp_f32 v{vT0}, v{vT0}")
    A(f"v_cvt_pk_bf16_f32 v{vT0}, v{vT0}, v{vT0}"); A(f"v_and_b32 v{vT0}, s{sHI16}, v{vT0}")
    A(f"v_sub_f32 v{vT1}, 1.0, v{vT0}"); A(f"v_cvt_pk_bf16_f32 v{vT1}, v{vT1}, v{vT1}"); A(f"v_and_b32 v{vT1}, s{sHI16}, v{vT1}")
    A(f"v_readfirstlane_b32 s{sG}, v{vT0}"); A(f"v_readfirstlane_b32 s{sOMG}, v{vT1}")
    A.label("L_nogate")
    A.nop(4)
    A.wait_vm(tq)
    def tagcheck(a, regs, tag, mask_s):
        for r in regs: a(f"v_xor_b32 v{r}, s{tag}, v{r}")
        a(f"v_or_b32 v{vT0}, v{regs[0]}, v{regs[1]}")
        for k in range(2, len(regs), 2):
            a(f"v_or3_b32 v{vT0}, v{vT0}, v{regs[k]}, v{regs[k+1]}")
        a(f"v_and_b32 v{vT0}, {mask_s}, v{vT0}")
        a(f"v_cmp_ne_u32 vcc, 0, v{vT0}")
    def poll_slow(name, issue, regs, tag, mask_s, dbgslot):
        B = Asm(); B.check = False
        B.label(f"L_slow_{name}")
        B(f"s_mov_b32 s{sCNT}, 0")
        B.label(f"L_slow_{name}_loop")
        B.nop(8)
        issue(B)
        B("s_waitcnt vmcnt(0)")
        tagcheck(B, regs, tag, mask_s)
        B(f"s_add_u32 s{sCNT}, s{sCNT}, 1")
        B.nop(4)
        B(f"s_cbranch_vccz L_back_{name}")
        B(f"s_cmp_lt_u32 s{sCNT}, 0x4000")
        B(f"s_cbranch_scc1 L_slow_{name}_loop")
        B(f"s_branch L_back_{name}")
        slow.append(B.text())
        A.nop(4)
        A(f"s_cbranch_vccnz L_slow_{name}")
        A.label(f"L_back_{name}")
    qregs = list(range(G, G + 8))
    tagcheck(A, qregs, sTAG16, "0xffff")
    poll_slow("q", qg_issue, qregs, sTAG16, "0xffff", 0)
    stamp()
    for t in range(2):
        A(f"v_perm_b32 v{G+4*t}, v{G+4*t+1}, v{G+4*t}, s{sPHI}")
        A(f"v_perm_b32 v{G+4*t+1}, v{G+4*t+3}, v{G+4*t+2}, s{sPHI}")
    A(f"v_lshrrev_b32 v{vT0}, 5, v{vL}"); A(f"v_mul_u32_u24 v{vT0}, {QLH}, v{vT0}")
    A(f"v_and_b32 v{vT1}, 31, v{vL}"); A(f"v_lshl_add_u32 v{vT0}, v{vT1}, 3, v{vT0}")
    A(f"s_lshr_b32 s{sT}, s3, 1"); A(f"s_mul_i32 s{sT}, s{sT}, {QLB}"); A(f"s_and_b32 s{sT2}, s3, 1"); A(f"s_mul_i32 s{sT2}, s{sT2}, {4*QLH}")
    A(f"s_add_u32 s{sT}, s{sT}, s{sT2}"); A(f"v_add_u32 v{vT0}, s{sT}, v{vT0}")
    for t in range(2):
        A(f"ds_write_b64 v{vT0}, v[{G+4*t}:{G+4*t+1}] offset:{QL+2*QLH*t}")
    A(f"v_and_b32 v{vT1}, 7, v{vL}"); A(f"v_mul_u32_u24 v{vT1}, {QLH}, v{vT1}")
    A(f"v_lshrrev_b32 v{vT2}, 4, v{vL}"); A(f"v_lshl_add_u32 v{vT1}, v{vT2}, 4, v{vT1}")
    A.wait_lg()
    A("s_barrier")
    for br in range(2):
        for kk in range(4):
            A(f"ds_read_b128 {ar(QF[br]+4*kk)}, v{vT1} offset:{QL+br*QLB+kk*64}")
    vOW, vSW = 17, 18
    A(f"v_and_b32 v{vT0}, 7, v{vL}"); A(f"v_mul_u32_u24 v{vOW}, {MLH}, v{vT0}"); A(f"v_lshl_add_u32 v{vOW}, v{vT2}, 7, v{vOW}")
    A(f"s_mul_i32 s{sT}, s3, {MLW}"); A(f"v_add_u32 v{vOW}, s{sT}, v{vOW}")
    A(f"s_lshl_b32 s{sT}, s3, 3"); A(f"v_lshlrev_b32 v{vSW}, 5, v{vT0}"); A(f"v_add_u32 v{vSW}, s{sT}, v{vSW}")
    A.wait_lg()
    stamp()

    tWO = {}
    def issueWO(br, buf):
        for e in range(8):
            A(f"s_add_u32 s{sT}, s{sWO}, {(8*(e&3)+(e>>2))*2048}")
            tWO[br] = A(f"buffer_load_dwordx4 {vr(VB[buf]+4*e)}, v{vWo}, {sr(WOA if br == 0 else WOB)}, s{sT} offen {polw}")

    def tile(t):
        br = 0 if t == 0 else 1
        first = t <= 1
        kb, vb = KB[t % 4], VB[t % 4]
        A.wait_vm(tK[t])
        for kk in range(4):
            for u in range(2):
                c = "0" if kk == 0 else vr(S+4*u)
                A(f"v_mfma_f32_16x16x32_bf16 {vr(S+4*u)}, {ar(kb+16*u+4*kk)}, {ar(QF[br]+4*kk)}, {c}")
        if t + 4 <= 8: issueK(t + 4)
        for i in range(4): A(f"v_cvt_pk_bf16_f32 v{C+i}, v{S+2*i}, v{S+2*i+1}")
        for i in range(4):
            A(f"v_lshlrev_b32 v{S+2*i}, 16, v{C+i}"); A(f"v_and_b32 v{S+2*i+1}, s{sHI16}, v{C+i}")
        for i in range(4): A(f"v_pk_mul_f32 v[{S+2*i}:{S+2*i+1}], v[{S+2*i}:{S+2*i+1}], s[{sSCP}:{sSCP+1}]")
        for i in range(4): A(f"v_cvt_pk_bf16_f32 v{C+i}, v{S+2*i}, v{S+2*i+1}")
        for i in range(4):
            A(f"v_lshlrev_b32 v{S+2*i}, 16, v{C+i}"); A(f"v_and_b32 v{S+2*i+1}, s{sHI16}, v{C+i}")
        A(f"v_max3_f32 v{vT0}, v{S}, v{S+1}, v{S+2}"); A(f"v_max3_f32 v{vT1}, v{S+3}, v{S+4}, v{S+5}")
        A(f"v_max3_f32 v{vT0}, v{vT0}, v{S+6}, v{S+7}")
        if first: A(f"v_max_f32 v{vM}, v{vT0}, v{vT1}")
        else: A(f"v_max3_f32 v{vM}, v{vT0}, v{vT1}, v{vM}")
        allreduce("v_max_f32", vM, vT1, [5, 4])
        if not first: A(f"v_mov_b32 v{vT2}, v{vML}")
        A(f"v_mul_f32 v{vML}, s{sL2E}, v{vM}")
        if not first:
            A(f"v_sub_f32 v{vT2}, v{vT2}, v{vML}"); A(f"v_exp_f32 v{vAl}, v{vT2}")
        for i in range(8): A(f"v_fma_f32 v{S+i}, v{S+i}, s{sL2E}, -v{vML}")
        for i in range(8): A(f"v_exp_f32 v{S+i}, v{S+i}")
        if not first:
            for i in range(16): A(f"v_pk_mul_f32 v[{O+2*i}:{O+2*i+1}], v[{O+2*i}:{O+2*i+1}], v[{vAl}:{vAl+1}] op_sel_hi:[1,0]")
        for i in range(4): A(f"v_cvt_pk_bf16_f32 v{P+i}, v{S+2*i}, v{S+2*i+1}")
        A(f"v_add_f32 v{vT0}, v{S}, v{S+1}"); A(f"v_add_f32 v{vT1}, v{S+2}, v{S+3}")
        A(f"v_add_f32 v{vT2}, v{S+4}, v{S+5}"); A(f"v_add_f32 v{vT3}, v{S+6}, v{S+7}")
        A(f"v_add_f32 v{vT0}, v{vT0}, v{vT1}"); A(f"v_add_f32 v{vT2}, v{vT2}, v{vT3}")
        if first: A(f"v_add_f32 v{vLs}, v{vT0}, v{vT2}")
        else:
            A(f"v_add_f32 v{vT0}, v{vT0}, v{vT2}"); A(f"v_fma_f32 v{vLs}, v{vLs}, v{vAl}, v{vT0}")
        A.wait_vm(tV[t])
        def perms(j):
            tb = T + 8 * (j & 1)
            for m in range(4):
                A(f"v_perm_b32 v{tb+m}, v{vb+8*m+4+j}, v{vb+8*m+j}, s{sPLO}")
                A(f"v_perm_b32 v{tb+4+m}, v{vb+8*m+4+j}, v{vb+8*m+j}, s{sPHI}")
        def pv(j):
            tb = T + 8 * (j & 1)
            for h in range(2):
                d = 2 * j + h
                c = "0" if first else vr(O+4*d)
                A(f"v_mfma_f32_16x16x32_bf16 {vr(O+4*d)}, {vr(tb+4*h)}, {vr(P)}, {c}")
        perms(0); perms(1); pv(0); perms(2); pv(1); perms(3); pv(2)
        if t + 4 <= 8: issueV(t + 4)
        elif t == 5: issueWO(0, 1)
        elif t == 6: issueWO(1, 2)
        pv(3)
        if t == 0 or t == 8:
            allreduce("v_add_f32", vLs, vT1, [5, 4])
            A(f"v_mov_b32 v{vT1}, v{vM}"); A(f"v_mov_b32 v{vT2}, v{vLs}")
            A(f"s_mov_b32 s{sEX}, 0x00ff00ff"); A(f"s_mov_b32 s{sEX+1}, 0x00ff00ff")
            A(f"s_mov_b64 exec, s[{sEX}:{sEX+1}]")
            for d in range(8): A(f"ds_write_b128 v{vOW}, {vr(O+4*d)} offset:{ML+br*MLB+16*d}")
            A("s_mov_b64 exec, 0xff")
            A(f"ds_write_b64 v{vSW}, v[{vT1}:{vT2}] offset:{STL+br*256}")
            A("s_mov_b64 exec, -1")
    for t in range(9):
        tile(t)
        if t in (0, 4): stamp()
    stamp()
    A.wait_lg()
    A("s_barrier")
    vMR, vSR, vGO, vGS = 17, 18, 19, 16
    A(f"v_lshrrev_b32 v{vT0}, 5, v{vL}"); A(f"s_lshl_b32 s{sT}, s3, 1"); A(f"v_add_u32 v{vT0}, s{sT}, v{vT0}")
    A(f"v_mul_u32_u24 v{vMR}, {MLH}, v{vT0}"); A(f"v_and_b32 v{vT1}, 31, v{vL}"); A(f"v_lshl_add_u32 v{vMR}, v{vT1}, 4, v{vMR}")
    A(f"v_lshlrev_b32 v{vSR}, 5, v{vT0}")
    MB = [VB[3], O]
    toks = {}
    for br in (1, 0):
        base = MB[br]
        for h in range(2): A(f"ds_read_b128 {vr(base+16+4*h)}, v{vSR} offset:{STL+br*256+16*h}")
        for w in range(4): toks[br] = A(f"ds_read_b128 {vr(base+4*w)}, v{vMR} offset:{ML+br*MLB+w*MLW}")
    A(f"v_lshrrev_b32 v{vT1}, 3, v{vL}"); A(f"v_and_b32 v{vT1}, 3, v{vT1}"); A(f"v_lshl_add_u32 v{vT1}, v{vT0}, 2, v{vT1}")
    A(f"v_lshlrev_b32 v{vGO}, 12, v{vT1}"); A(f"v_and_b32 v{vT1}, 7, v{vL}"); A(f"v_lshl_add_u32 v{vGO}, v{vT1}, 4, v{vGO}")
    A(f"v_lshlrev_b32 v{vGS}, 8, v{vT0}")
    sP1, sST = sKB, sKA
    A(f"s_lshr_b32 s{sT}, s2, 5"); A(f"s_lshl_b32 s{sP1}, s{sT}, 17"); A(f"s_lshl_b32 s{sT2}, s{sS}, 7"); A(f"s_add_u32 s{sP1}, s{sP1}, s{sT2}"); A(f"s_add_u32 s{sP1}, s{sP1}, {WS_P1}")
    A(f"s_lshl_b32 s{sST}, s{sT}, 11"); A(f"s_lshl_b32 s{sT2}, s{sS}, 3"); A(f"s_add_u32 s{sST}, s{sST}, s{sT2}"); A(f"s_add_u32 s{sST}, s{sST}, {WS_ST}")
    A(f"v_mov_b32 v{X}, s{sTAG12}")
    vTAG = X
    for br in (1, 0):
        base = MB[br]; st = base + 16
        A.wait_lg(toks[br])
        A(f"v_max3_f32 v{vT0}, v{st}, v{st+2}, v{st+4}"); A(f"v_max_f32 v{vT0}, v{vT0}, v{st+6}")
        A(f"v_mul_f32 v{vT1}, s{sL2E}, v{vT0}")
        for w in range(4): A(f"v_mul_f32 v{st+2*w}, s{sL2E}, v{st+2*w}")
        for w in range(4): A(f"v_sub_f32 v{st+2*w}, v{st+2*w}, v{vT1}")
        for w in range(4): A(f"v_exp_f32 v{st+2*w}, v{st+2*w}")
        for c in range(4): A(f"v_mul_f32 v{base+c}, v{base+c}, v{st}")
        A(f"v_mul_f32 v{vT1}, v{st+1}, v{st}")
        for w in range(1, 4):
            for c in range(4): A(f"v_fmac_f32 v{base+c}, v{base+4*w+c}, v{st+2*w}")
            A(f"v_fmac_f32 v{vT1}, v{st+2*w+1}, v{st+2*w}")
        for c in range(4): A(f"v_bfi_b32 v{base+4+c}, s{sM12}, v{vTAG}, v{base+c}")
        A(f"v_bfi_b32 v{base+8}, s{sM12}, v{vTAG}, v{vT0}"); A(f"v_bfi_b32 v{base+9}, s{sM12}, v{vTAG}, v{vT1}")
        A(f"s_add_u32 s{sT}, s{sP1}, {br << 20}")
        A(f"buffer_store_dwordx4 {vr(base+4)}, v{vGO}, {sr(WS)}, s{sT} offen sc1")
        A(f"s_add_u32 s{sT}, s{sST}, {br << 14}")
        A(f"s_mov_b32 s{sEX}, 1"); A(f"s_mov_b32 s{sEX+1}, 1"); A(f"s_mov_b64 exec, s[{sEX}:{sEX+1}]")
        A(f"buffer_store_dwordx2 v[{base+8}:{base+9}], v{vGS}, {sr(WS)}, s{sT} offen sc1")
        A("s_mov_b64 exec, -1")
    stamp()
    sGP, sGS = sKB, sKA
    A(f"s_lshr_b32 s{sT}, s3, 1"); A(f"s_lshl_b32 s{sGP}, s{sT}, 19"); A(f"s_lshl_b32 s{sT2}, s{sRB}, 12"); A(f"s_add_u32 s{sGP}, s{sGP}, s{sT2}")
    A(f"s_and_b32 s{sT2}, s3, 1"); A(f"s_lshl_b32 s{sT2}, s{sT2}, 6"); A(f"s_add_u32 s{sGP}, s{sGP}, s{sT2}"); A(f"s_add_u32 s{sGP}, s{sGP}, {WS_P1}")
    A(f"s_lshl_b32 s{sGS}, s{sT}, 13"); A(f"s_lshr_b32 s{sT2}, s{sRB}, 2"); A(f"s_lshl_b32 s{sT2}, s{sT2}, 8"); A(f"s_add_u32 s{sGS}, s{sGS}, s{sT2}"); A(f"s_add_u32 s{sGS}, s{sGS}, {WS_ST}")
    vA1, vA2 = 17, 18
    A(f"v_lshrrev_b32 v{vT0}, 2, v{vL}"); A(f"v_lshlrev_b32 v{vA1}, 7, v{vT0}"); A(f"v_and_b32 v{vT1}, 3, v{vL}"); A(f"v_lshl_add_u32 v{vA1}, v{vT1}, 4, v{vA1}")
    A(f"v_lshlrev_b32 v{vA2}, 3, v{vT0}")
    GB = [ACC, G]
    sGP2, sGS2 = sWQ, sSC
    A(f"s_add_u32 s{sGP2}, s{sGP}, {1 << 20}"); A(f"s_add_u32 s{sGS2}, s{sGS}, {1 << 14}")
    def pg_issue(a):
        r = None
        for br in (1, 0):
            gp, gs = (sGP, sGS) if br == 0 else (sGP2, sGS2)
            for t in range(2):
                a(f"buffer_load_dwordx4 {vr(GB[br]+4*t)}, v{vA1}, {sr(WS)}, s{gp} offen offset:{t*2048} sc1")
                r = a(f"buffer_load_dwordx2 v[{GB[br]+8+2*t}:{GB[br]+9+2*t}], v{vA2}, {sr(WS)}, s{gs} offen offset:{t*128} sc1")
        return r
    tp = pg_issue(A)
    WT = [VB[3], VB[0]]
    for br in range(2):
        A.wait_vm(tWO[br])
        src = VB[1 + br]
        for j in range(4):
            for m in range(4):
                A(f"v_perm_b32 v{WT[br]+8*j+m}, v{src+8*m+4+j}, v{src+8*m+j}, s{sPLO}")
                A(f"v_perm_b32 v{WT[br]+8*j+4+m}, v{src+8*m+4+j}, v{src+8*m+j}, s{sPHI}")
    stamp()
    A.wait_vm(tp)
    pregs = list(range(GB[0], GB[0] + 12)) + list(range(GB[1], GB[1] + 12))
    tagcheck(A, pregs, sTAG12, f"s{sM12}")
    poll_slow("p", pg_issue, pregs, sTAG12, f"s{sM12}", 1)
    stamp()
    for br in range(2):
        g = GB[br]; st = g + 8
        tm, tl, tt = S + 4 * br, S + 4 * br + 1, S + 4 * br + 2
        A(f"v_max_f32 v{tm}, v{st}, v{st+2}")
        allreduce("v_max_f32", tm, tt, [2, 3, 4, 5])
        A(f"v_mul_f32 v{tm}, s{sL2E}, v{tm}")
        for t in range(2): A(f"v_mul_f32 v{st+2*t}, s{sL2E}, v{st+2*t}")
        for t in range(2): A(f"v_sub_f32 v{st+2*t}, v{st+2*t}, v{tm}")
        for t in range(2): A(f"v_exp_f32 v{st+2*t}, v{st+2*t}")
        for c in range(4): A(f"v_mul_f32 v{g+c}, v{g+c}, v{st}")
        A(f"v_mul_f32 v{tl}, v{st+1}, v{st}")
        for c in range(4): A(f"v_fmac_f32 v{g+c}, v{g+4+c}, v{st+2}")
        A(f"v_fmac_f32 v{tl}, v{st+3}, v{st+2}")
        for v in [g, g + 1, g + 2, g + 3, tl]: allreduce("v_add_f32", v, tt, [2, 3, 4, 5])
        A(f"v_rcp_f32 v{tl}, v{tl}")
        for c in range(4): A(f"v_mul_f32 v{g+c}, v{g+c}, v{tl}")
        A(f"v_cvt_pk_bf16_f32 v{g+4}, v{g}, v{g+1}"); A(f"v_cvt_pk_bf16_f32 v{g+5}, v{g+2}, v{g+3}")
    A(f"v_and_b32 v{vT0}, 3, v{vL}"); A(f"v_lshlrev_b32 v{vT0}, 3, v{vT0}"); A(f"s_lshl_b32 s{sT}, s3, 5"); A(f"v_add_u32 v{vT0}, s{sT}, v{vT0}")
    A("s_mov_b64 exec, 15")
    for br in range(2): A(f"ds_write_b64 v{vT0}, v[{GB[br]+4}:{GB[br]+5}] offset:{OL+br*128}")
    A("s_mov_b64 exec, -1")
    A(f"v_bfe_u32 v{vT0}, v{vL}, 3, 1"); A(f"v_lshlrev_b32 v{vT0}, 6, v{vT0}"); A(f"v_lshrrev_b32 v{vT1}, 4, v{vL}"); A(f"v_lshl_add_u32 v{vT0}, v{vT1}, 4, v{vT0}")
    A.wait_lg()
    A("s_barrier")
    for br in range(2): A(f"ds_read_b128 {vr(P+4*br)}, v{vT0} offset:{OL+br*128}")
    A(f"v_lshrrev_b32 v{vT0}, 5, v{vL}"); A(f"v_lshlrev_b32 v{vA1}, 12, v{vT0}"); A(f"v_and_b32 v{vT0}, 15, v{vL}"); A(f"v_lshl_add_u32 v{vA1}, v{vT0}, 5, v{vA1}")
    A(f"v_and_b32 v{vT0}, 16, v{vL}"); A(f"v_add_u32 v{vA1}, v{vA1}, v{vT0}")
    A(f"v_cmp_ne_u32 vcc, 0, v{vT0}")
    A(f"s_lshl_b32 s{sGP}, s{sRB}, 13"); A(f"s_and_b32 s{sT}, s{sS}, 1"); A(f"s_lshl_b32 s{sT}, s{sT}, 11"); A(f"s_add_u32 s{sGP}, s{sGP}, s{sT}")
    A(f"s_lshl_b32 s{sT}, s3, 9"); A(f"s_add_u32 s{sGP}, s{sGP}, s{sT}"); A(f"s_add_u32 s{sGP}, s{sGP}, {WS_P2}")
    A.wait_lg()
    DO = [VB[1], VB[2]]
    for br in (1, 0):
        for d in range(8):
            A(f"v_mfma_f32_16x16x32_bf16 {vr(DO[br]+4*d)}, {vr(P+4*br)}, {vr(WT[br]+4*d)}, 0")
    for br in (1, 0):
        for c in range(4): A(f"v_cndmask_b32 v{T+4*br+c}, v{DO[br]+4*c}, v{DO[br]+16+4*c}, vcc")
        for c in range(4): A(f"v_bfi_b32 v{T+4*br+c}, s{sM12}, v{vTAG}, v{T+4*br+c}")
        A(f"s_add_u32 s{sT}, s{sGP}, {br << 20}")
        A(f"buffer_store_dwordx4 {vr(T+4*br)}, v{vA1}, {sr(WS)}, s{sT} offen sc1")
    stamp()
    def write_stamps():
        if not stamps: return
        A.wait_lg(); A("s_waitcnt lgkmcnt(0)")
        A(f"s_lshl_b32 s{sT}, s2, 2"); A(f"s_add_u32 s{sT}, s{sT}, s3"); A(f"s_lshl_b32 s{sT}, s{sT}, 7"); A(f"s_add_u32 s{sT}, s{sT}, {WS_STAMP}")
        A(f"s_getreg_b32 s{sT2}, hwreg(HW_REG_XCC_ID)")
        A(f"v_mov_b32 v{vT0}, 0"); A("s_mov_b64 exec, 1")
        n = 12
        for k in range(0, n, 2):
            for c in range(4): A(f"v_mov_b32 v{VB[0]+c}, s{ST0+2*k+c}")
            A(f"buffer_store_dwordx4 {vr(VB[0])}, v{vT0}, {sr(WS)}, s{sT} offen offset:{k*8}")
        A("s_memrealtime s[8:9]"); A("s_waitcnt lgkmcnt(0)"); A.smem_pending = set()
        A(f"v_mov_b32 v{VB[0]}, s8"); A(f"v_mov_b32 v{VB[0]+1}, s9"); A(f"v_mov_b32 v{VB[0]+2}, s{sT2}"); A(f"v_mov_b32 v{VB[0]+3}, 0")
        A(f"buffer_store_dwordx4 {vr(VB[0])}, v{vT0}, {sr(WS)}, s{sT} offen offset:{n*8}")
        A("s_mov_b64 exec, -1")
    A("s_cmp_lg_u32 s3, 0"); A("s_cbranch_scc1 L_fin")
    A(f"v_lshrrev_b32 v{vT0}, 1, v{vL}"); A(f"v_lshlrev_b32 v{vA1}, 13, v{vT0}"); A(f"v_and_b32 v{vT0}, 1, v{vL}"); A(f"v_lshl_add_u32 v{vA1}, v{vT0}, 4, v{vA1}")
    A(f"s_lshl_b32 s{sGP}, s{sB}, 12"); A(f"s_and_b32 s{sT}, s2, 127"); A(f"s_lshl_b32 s{sT}, s{sT}, 5"); A(f"s_add_u32 s{sGP}, s{sGP}, s{sT}"); A(f"s_add_u32 s{sGP}, s{sGP}, {WS_P2}")
    F = VB[1]
    def fg_issue(a):
        r = None
        for br in range(2):
            for t in range(4):
                a(f"s_add_u32 s{sT}, s{sGP}, {(br << 20) + (t << 18)}")
                r = a(f"buffer_load_dwordx4 {vr(F+16*br+4*t)}, v{vA1}, {sr(WS)}, s{sT} offen sc1")
        return r
    A.nop(8)
    tf = fg_issue(A)
    A.wait_vm(tf)
    fregs = list(range(F, F + 32))
    tagcheck(A, fregs, sTAG12, f"s{sM12}")
    poll_slow("f", fg_issue, fregs, sTAG12, f"s{sM12}", 2)
    for br in range(2):
        f = F + 16 * br
        for c in range(4): A(f"v_add_f32 v{f+c}, v{f+c}, v{f+4+c}")
        for c in range(4): A(f"v_add_f32 v{f+8+c}, v{f+8+c}, v{f+12+c}")
        for c in range(4): A(f"v_add_f32 v{f+c}, v{f+c}, v{f+8+c}")
        for c in range(4): allreduce("v_add_f32", f + c, vT1, [1, 2, 3, 4, 5])
        sg = sG if br == 0 else sOMG
        for h in range(2): A(f"v_cvt_pk_bf16_f32 v{f+4+h}, v{f+2*h}, v{f+2*h+1}")
        for h in range(2):
            A(f"v_lshlrev_b32 v{f+2*h}, 16, v{f+4+h}"); A(f"v_and_b32 v{f+2*h+1}, s{sHI16}, v{f+4+h}")
        for c in range(4): A(f"v_mul_f32 v{f+c}, s{sg}, v{f+c}")
        for h in range(2): A(f"v_cvt_pk_bf16_f32 v{f+4+h}, v{f+2*h}, v{f+2*h+1}")
        for h in range(2):
            A(f"v_lshlrev_b32 v{f+2*h}, 16, v{f+4+h}"); A(f"v_and_b32 v{f+2*h+1}, s{sHI16}, v{f+4+h}")
    for c in range(4): A(f"v_add_f32 v{F+c}, v{F+c}, v{F+16+c}")
    for h in range(2): A(f"v_cvt_pk_bf16_f32 v{F+4+h}, v{F+2*h}, v{F+2*h+1}")
    A(f"v_lshlrev_b32 v{vT0}, 3, v{vL}")
    A(f"s_lshl_b32 s{sT}, s2, 4")
    A("s_mov_b64 exec, 3")
    A(f"buffer_store_dwordx2 v[{F+4}:{F+5}], v{vT0}, {sr(OUT)}, s{sT} offen")
    A("s_mov_b64 exec, 1")
    A("s_cmp_lg_u32 s2, 0"); A("s_cbranch_scc1 L_noe")
    A(f"v_mov_b32 v{vT1}, s{sE1}")
    A(f"buffer_store_dword v{vT1}, v{vT0}, {sr(WS)}, 0 offen sc1")
    A.label("L_noe")
    A("s_mov_b64 exec, -1")
    A.label("L_fin")
    A.nop(8)
    if stretch is not None:
        A("s_memrealtime s[30:31]"); A("s_waitcnt lgkmcnt(0)"); A.smem_pending = set()
        k = ST0 + 2 * stretch if stretch >= 0 else 30
        A(f"s_sub_u32 s{sT}, s{k}, s{ST0}"); A(f"s_mul_i32 s{sT}, s{sT}, 10"); A(f"s_add_u32 s{sT}, s{sT}, s30")
        A.label("L_stretch")
        A("s_sleep 8")
        A("s_memrealtime s[28:29]"); A("s_waitcnt lgkmcnt(0)"); A.smem_pending = set()
        A(f"s_sub_u32 s{sT2}, s28, s{sT}"); A(f"s_cmp_lt_i32 s{sT2}, 0"); A("s_cbranch_scc1 L_stretch")
    else:
        write_stamps()
    A.label("L_end")
    A("s_endpgm")
    for s in slow: A.raw(s.rstrip())
    A.raw('.section .rodata,"a"'); A.raw(".p2align 6"); A.raw(f".amdhsa_kernel {NAME}")
    A.raw("  .amdhsa_next_free_vgpr 512"); A.raw("  .amdhsa_next_free_sgpr 102"); A.raw("  .amdhsa_accum_offset 256")
    A.raw("  .amdhsa_group_segment_fixed_size 0"); A.raw("  .amdhsa_kernarg_size 112"); A.raw("  .amdhsa_user_sgpr_count 2")
    A.raw("  .amdhsa_user_sgpr_kernarg_segment_ptr 1"); A.raw("  .amdhsa_system_sgpr_workgroup_id_x 1")
    A.raw("  .amdhsa_float_denorm_mode_32 3")
    A.raw(".end_amdhsa_kernel")
    return A.text()

if __name__ == "__main__":
    open("v1_nt.s", "w").write(gen())
    open("v1_nt_st.s", "w").write(gen(stamps=True))
    open("v1_def.s", "w").write(gen(pol=""))
    open("v1_x_end.s", "w").write(gen(stamps=True, stretch=-1))
    open("v1_x_1.s", "w").write(gen(stamps=True, stretch=1))
    open("v1_x_4.s", "w").write(gen(stamps=True, stretch=4))
    open("v1_x_7.s", "w").write(gen(stamps=True, stretch=7))
    open("v1_x_end_def.s", "w").write(gen(pol="", stamps=True, stretch=-1))
```
